```python
import torch

def _softmax(x, axis=-1):
    return torch.softmax(x, dim=axis)
def _gelu(x):
    return torch.nn.functional.gelu(x, approximate="tanh")
def _silu(x):
    return torch.nn.functional.silu(x)
def _sigmoid(x):
    return torch.sigmoid(x)
def _layernorm(x, axis=-1, eps=1e-5):
    m = x.mean(dim=axis, keepdim=True)
    v = x.var(dim=axis, keepdim=True, unbiased=False)
    return (x - m) / torch.sqrt(v + eps)
def _scatter_add(tgt, idx, src, axis=0):
    return tgt.clone().index_add_(axis, idx, src)
def _segment_sum(src, seg, n):
    out = torch.zeros((n,) + src.shape[1:], dtype=src.dtype)
    return out.index_add_(0, seg, src)
def _pad(x, pw):
    flat = tuple(v for pair in reversed(pw) for v in pair)
    return torch.nn.functional.pad(x, flat)

kernel_name = 'standalone__sliding_local_strided__prompt'

def setup_inputs():

    _w = (lambda a: (lambda t: t.to(torch.bfloat16) if t.is_floating_point() else t)(torch.as_tensor(a)))
    B, H, S, D = 1, 32, 2048, 128
    return {
        "q": _w((lambda *s: torch.randn(*s, dtype=torch.bfloat16) * 0.8)(B, H, S, D)),
        "k": _w((lambda *s: torch.randn(*s, dtype=torch.bfloat16) * 0.8)(B, H, S, D)),
        "v": _w((lambda *s: torch.randn(*s, dtype=torch.bfloat16) * 0.05)(B, H, S, D)),
    }

def reference(q, k, v):
    B, H, S, D = q.shape
    W, dil = 8, 4
    scale = D ** -0.5
    pos = torch.arange(S)
    kidx = pos[:, None] - torch.arange(W)[None, :] * dil
    valid = kidx >= 0
    kidx = torch.where(valid, kidx, torch.zeros_like(kidx))
    idx = torch.reshape(kidx, (1, 1, S * W, 1))
    idx = (lambda x, n, axis: torch.repeat_interleave(x, n, dim=axis))(idx, B, 0)
    idx = (lambda x, n, axis: torch.repeat_interleave(x, n, dim=axis))(idx, H, 1)
    idx = (lambda x, n, axis: torch.repeat_interleave(x, n, dim=axis))(idx, D, 3)
    kg = torch.reshape((lambda x, i, axis: torch.take_along_dim(x, i, dim=axis))(k, idx, 2), (B, H, S, W, D))
    vg = torch.reshape((lambda x, i, axis: torch.take_along_dim(x, i, dim=axis))(v, idx, 2), (B, H, S, W, D))
    scores = torch.einsum("bhsd,bhswd->bhsw", q, kg) * scale
    mask_f = (lambda x, dt: x.to(dt))(valid, q.dtype)[None, None, :, :]
    scores = scores + (mask_f - 1.0) * 1e9
    p = _softmax(scores, axis=-1)
    return torch.einsum("bhsw,bhswd->bhsd", p, vg)
```

```python
import sys, argparse

NAME = "standalone__sliding_local_strided__prompt"

HEADER = """; Kernarg layout for this problem (48 bytes, ptrs only, base s[0:1]):
"""


def m0_of_lane(l):
    g = l >> 4
    jl = l & 15
    qj = (jl >> 2) + 4 * (jl & 3)
    return (qj + 4 - g) >> 2


def mask_where(f):
    m = 0
    for l in range(64):
        if f(l):
            m |= 1 << l
    return m


class Gen:
    def __init__(self):
        self.lines = []

    def e(self, s):
        self.lines.append("    " + s)

    def lab(self, s):
        self.lines.append(s + ":")

    def c(self, s):
        self.lines.append("    ; " + s)


def gen(N=2, WPB=4, ld_flags="", st_flags="", xcd=True, agpr_qk=False, st_mode="plain"):
    g = Gen()
    e = g.e
    SUB = WPB // 4
    nwaves = 4096 // N
    G = nwaves // WPB
    tiles_per_wg = N * SUB
    vfree = [1]

    def valloc(n, align=2):
        b = (vfree[0] + align - 1) // align * align
        vfree[0] = b + n
        return b
    afree = [0]

    def aalloc(n):
        b = afree[0]
        afree[0] = b + n
        return b

    vQK = valloc(1, 1)
    vV = valloc(4, 1)
    vHK = valloc(1, 1)
    vHV = valloc(2, 1)
    selT = valloc(1, 1); selA = valloc(1, 1); selB = valloc(1, 1)
    sel1 = valloc(1, 1); sel2 = valloc(1, 1); sel3 = valloc(1, 1)
    biasA = valloc(1, 1); biasB = valloc(1, 1)
    tmp = valloc(10, 2)
    Sp = valloc(4, 2); Sc = valloc(4, 2)
    P = valloc(4, 2)
    Vp = valloc(32, 2)
    O = valloc(32, 2)
    if agpr_qk:
        Q = [("a", aalloc(16)) for t in range(N)]
        K = [("a", aalloc(16)) for t in range(N + 1)]
    else:
        Q = [("v", valloc(16, 2)) for t in range(N)]
        K = [("v", valloc(16, 2)) for t in range(N + 1)]
    VH = valloc(8, 2)
    V = [valloc(16, 2) for t in range(N)]
    nv = vfree[0]
    na = afree[0]
    accum = (nv + 3) // 4 * 4
    total = accum + na if na else nv

    def r(t, i, n=4):
        k, b = t
        return f"{k}[{b+i}:{b+i+n-1}]"

    def v4(b):
        return f"v[{b}:{b+3}]"

    sQ, sK, sV, sO = 8, 12, 16, 20
    sBase = 24
    sHalo = 25
    sT = 26
    sPLo, sPHi = 40, 41
    sScale, sLog2e, sHiMask, sBias = 42, 43, 44, 45
    sL, sW = 46, 47

    e(f"s_cmp_ge_u32 s2, {G}")
    e("s_cbranch_scc1 L_done")
    e("s_load_dwordx4 s[28:31], s[0:1], 0")
    e("s_load_dwordx4 s[32:35], s[0:1], 16")
    e("v_lshrrev_b32 v%d, 6, v0" % tmp)
    e("v_and_b32 v0, 63, v0")
    e("v_readfirstlane_b32 s%d, v%d" % (sW, tmp))
    if xcd:
        e(f"s_and_b32 s3, s2, 7")
        e(f"s_lshr_b32 s{sL}, s2, 3")
        e(f"s_mul_i32 s3, s3, {G//8}")
        e(f"s_add_u32 s{sL}, s{sL}, s3")
    else:
        e(f"s_mov_b32 s{sL}, s2")
    t0, t1, t2 = tmp, tmp + 1, tmp + 2
    e(f"v_lshrrev_b32 v{t0}, 4, v0")
    e(f"v_and_b32 v{t1}, 15, v0")
    e(f"v_lshlrev_b32 v{vV}, 10, v{t0}")
    e(f"v_lshl_add_u32 v{vV}, v{t1}, 4, v{vV}")
    e(f"v_lshrrev_b32 v{t2}, 2, v{t1}")
    e(f"v_and_b32 v{vQK}, 3, v{t1}")
    e(f"v_lshl_add_u32 v{vQK}, v{vQK}, 2, v{t2}")
    e(f"v_lshlrev_b32 v{vQK}, 10, v{vQK}")
    e(f"v_lshl_add_u32 v{vQK}, v{t0}, 4, v{vQK}")
    for i in range(1, 4):
        e(f"v_add_u32 v{vV+i}, {4096*i}, v{vV}")
    e(f"s_and_b32 s3, s{sW}, 3")
    e(f"s_lshl_b32 s3, s3, 8")
    if SUB > 1:
        e(f"s_lshr_b32 s{sW}, s{sW}, 2")
        e(f"s_mul_i32 s{sL}, s{sL}, {SUB}")
        e(f"s_add_u32 s{sL}, s{sL}, s{sW}")
    e(f"s_mul_i32 s{sBase}, s{sL}, {N*16384}")
    e(f"s_and_b32 s4, s{sBase}, {524288-1}")
    e(f"s_sub_u32 s{sHalo}, s{sBase}, 16384")
    e(f"s_add_u32 s{sHalo}, s{sHalo}, s3")
    e(f"s_cmp_eq_u32 s4, 0")
    e(f"s_cselect_b32 s{sHalo}, s{sBase}, s{sHalo}")
    e(f"s_cselect_b32 s{sBias}, 0xce6e0000, 0")
    e(f"s_cselect_b32 s5, 0xff, -1")
    e(f"s_add_u32 s{sBase}, s{sBase}, s3")
    e(f"v_and_b32 v{vHK}, s5, v{vQK}")
    e(f"v_and_b32 v{vHV}, s5, v{vV+2}")
    e(f"v_and_b32 v{vHV+1}, s5, v{vV+3}")
    for t in range(N):
        e(f"s_add_u32 s{sT+t}, s{sBase}, {16384*t}") if False else None
    e("s_waitcnt lgkmcnt(0)")
    for (srd, p) in ((sQ, 28), (sK, 30), (sV, 32), (sO, 34)):
        e(f"s_mov_b32 s{srd}, s{p}")
        e(f"s_and_b32 s{srd+1}, s{p+1}, 0xffff")
        e(f"s_mov_b32 s{srd+2}, 0x1000000")
        e(f"s_mov_b32 s{srd+3}, 0x20000")
    sT = 28
    for t in range(N):
        e(f"s_add_u32 s{sT+t}, s{sBase}, {16384*t}")

    loads = []

    def ld(dst, voff, srd, soff, off, tag):
        o = f" offset:{off}" if off else ""
        e(f"buffer_load_dwordx4 {dst}, v{voff}, s[{srd}:{srd+3}], s{soff} offen{o} {ld_flags}".rstrip())
        loads.append(tag)

    e("s_mov_b32 exec_lo, 0xcccccccc")
    e("s_mov_b32 exec_hi, 0xcccccccc")
    for kk in range(4):
        ld(r(K[0], 4 * kk), vHK, sK, sHalo, 64 * kk, ("K", -1))
    e("s_mov_b64 exec, -1")
    for t in range(N):
        for kk in range(4):
            ld(r(K[t + 1], 4 * kk), vQK, sK, sT + t, 64 * kk, ("K", t))
        for kk in range(4):
            ld(r(Q[t], 4 * kk), vQK, sQ, sT + t, 64 * kk, ("Q", t))
        if t == 0:
            for i in range(2):
                ld(v4(VH + 4 * i), vHV + i, sV, sHalo, 0, ("V", -1))
        for i in range(4):
            ld(v4(V[t] + 4 * i), vV + i, sV, sT + t, 0, ("V", t))
    nloads = len(loads)

    e(f"s_mov_b32 s{sPLo}, 0x05040100")
    e(f"s_mov_b32 s{sPHi}, 0x07060302")
    e(f"s_mov_b32 s{sScale}, 0x3db504f3")
    e(f"s_mov_b32 s{sLog2e}, 0x3fb8aa3b")
    e(f"s_mov_b32 s{sHiMask}, 0xffff0000")
    tab = {
        selT: [0x03020100, 0x05040302, 0x07060504, 0x07060706, 0x07060706],
        selA: [0x01000c0c] * 4 + [0x05040c0c],
        selB: [0x03020c0c] * 3 + [0x05040c0c, 0x07060c0c],
        sel1: [0x03020100, 0x01000c0c] + [0x0c0c0c0c] * 3,
        sel2: [0x0c0c0c0c, 0x0c0c0302, 0x03020100, 0x01000c0c, 0x0c0c0c0c],
        sel3: [0x0c0c0c0c] * 3 + [0x0c0c0302, 0x03020100],
    }
    for reg, vals in tab.items():
        e(f"v_mov_b32 v{reg}, {vals[2]:#x}")
    e(f"v_mov_b32 v{biasA}, 0")
    e(f"v_mov_b32 v{biasB}, 0")
    for m in (0, 1, 3, 4):
        mk = mask_where(lambda l: m0_of_lane(l) == m)
        e(f"s_mov_b32 exec_lo, {mk & 0xffffffff:#x}")
        e(f"s_mov_b32 exec_hi, {mk >> 32:#x}")
        for reg, vals in tab.items():
            if vals[m] != vals[2]:
                e(f"v_mov_b32 v{reg}, {vals[m]:#x}")
        if m <= 1:
            e(f"v_mov_b32 v{biasA}, s{sBias}")
        if m == 0:
            e(f"v_mov_b32 v{biasB}, s{sBias}")
    e("s_mov_b64 exec, -1")
    for dt in range(8):
        e(f"v_mov_b32 v{Vp + 4*dt + 2}, 0")

    stores = [0]

    def wait_for(tagset):
        last = max(i for i, t in enumerate(loads) if t in tagset)
        n = (nloads - 1 - last) + stores[0]
        assert n <= 63
        e(f"s_waitcnt vmcnt({n})")

    def perm_v(src, slot, halo=False):
        for dt in range(8):
            q = dt >> 1
            sel = sPHi if dt & 1 else sPLo
            if not halo:
                e(f"v_perm_b32 v{Vp + 4*dt + 2*slot}, v{src + 4 + q}, v{src + q}, s{sel}")
                e(f"v_perm_b32 v{Vp + 4*dt + 2*slot + 1}, v{src + 12 + q}, v{src + 8 + q}, s{sel}")
            else:
                e(f"v_perm_b32 v{Vp + 4*dt + 2*slot + 1}, v{src + 4 + q}, v{src + q}, s{sel}")

    for t in range(N):
        g.c(f"---- tile {t} ----")
        wait_for({("K", t), ("Q", t), ("K", t - 1)})
        for kk in range(4):
            c = "0" if kk == 0 else v4(Sp)
            e(f"v_mfma_f32_16x16x32_bf16 {v4(Sp)}, {r(K[t], 4*kk)}, {r(Q[t], 4*kk)}, {c}")
            c = "0" if kk == 0 else v4(Sc)
            e(f"v_mfma_f32_16x16x32_bf16 {v4(Sc)}, {r(K[t+1], 4*kk)}, {r(Q[t], 4*kk)}, {c}")
        X1, X2, X3, T, a, b, m1, m2 = (tmp + i for i in range(8))
        e("s_nop 7")
        e(f"v_cvt_pk_bf16_f32 v{X1}, v{Sp+2}, v{Sp+3}")
        e(f"v_cvt_pk_bf16_f32 v{X2}, v{Sc}, v{Sc+1}")
        e(f"v_cvt_pk_bf16_f32 v{X3}, v{Sc+2}, v{Sc+3}")
        e(f"v_perm_b32 v{T}, v{X2}, v{X1}, v{selT}")
        e(f"v_perm_b32 v{a}, v{X3}, v{T}, v{selA}")
        e(f"v_perm_b32 v{b}, v{X3}, v{T}, v{selB}")
        e(f"v_mul_f32 v{a}, s{sScale}, v{a}")
        e(f"v_mul_f32 v{b}, s{sScale}, v{b}")
        e(f"v_cvt_pk_bf16_f32 v{T}, v{a}, v{b}")
        e(f"v_lshlrev_b32 v{a}, 16, v{T}")
        e(f"v_and_b32 v{b}, s{sHiMask}, v{T}")
        if t == 0:
            e(f"v_add_f32 v{a}, v{a}, v{biasA}")
            e(f"v_add_f32 v{b}, v{b}, v{biasB}")
        e(f"v_max_f32 v{m1}, v{a}, v{b}")
        e(f"v_max_f32 v{m2}, v{a}, v{b}")
        e("s_nop 1")
        e(f"v_permlane32_swap_b32 v{m1}, v{m2}")
        e(f"v_max_f32 v{X1}, v{m1}, v{m2}")
        e(f"v_max_f32 v{X2}, v{m1}, v{m2}")
        e("s_nop 1")
        e(f"v_permlane16_swap_b32 v{X1}, v{X2}")
        e(f"v_max_f32 v{m1}, v{X1}, v{X2}")
        e(f"v_sub_f32 v{a}, v{a}, v{m1}")
        e(f"v_sub_f32 v{b}, v{b}, v{m1}")
        e(f"v_mul_f32 v{a}, s{sLog2e}, v{a}")
        e(f"v_mul_f32 v{b}, s{sLog2e}, v{b}")
        e(f"v_exp_f32 v{a}, v{a}")
        e(f"v_exp_f32 v{b}, v{b}")
        e("s_nop 0")
        e(f"v_add_f32 v{m1}, v{a}, v{b}")
        e(f"v_add_f32 v{m2}, v{a}, v{b}")
        e("s_nop 1")
        e(f"v_permlane32_swap_b32 v{m1}, v{m2}")
        e(f"v_add_f32 v{X1}, v{m1}, v{m2}")
        e(f"v_add_f32 v{X2}, v{m1}, v{m2}")
        e("s_nop 1")
        e(f"v_permlane16_swap_b32 v{X1}, v{X2}")
        e(f"v_add_f32 v{m1}, v{X1}, v{X2}")
        e(f"v_rcp_f32 v{m1}, v{m1}")
        e("s_nop 0")
        e(f"v_mul_f32 v{a}, v{a}, v{m1}")
        e(f"v_mul_f32 v{b}, v{b}, v{m1}")
        e(f"v_cvt_pk_bf16_f32 v{T}, v{a}, v{b}")
        slot = t & 1
        cur, prev = 2 * slot, 2 * (1 - slot)
        e(f"v_mov_b32 v{P + prev}, 0")
        e(f"v_perm_b32 v{P + prev + 1}, v{T}, v{T}, v{sel1}")
        e(f"v_perm_b32 v{P + cur}, v{T}, v{T}, v{sel2}")
        e(f"v_perm_b32 v{P + cur + 1}, v{T}, v{T}, v{sel3}")
        wait_for({("V", t), ("V", t - 1)})
        if t == 0:
            perm_v(VH, 1, halo=True)
        perm_v(V[t], slot)
        e("s_nop 1")
        for dt in range(8):
            e(f"v_mfma_f32_16x16x32_bf16 {v4(O + 4*dt)}, {v4(P)}, {v4(Vp + 4*dt)}, 0")
        e("s_nop 7")
        for rr in range(4):
            for q in range(4):
                e(f"v_cvt_pk_bf16_f32 v{V[t] + 4*rr + q}, v{O + 8*q + rr}, v{O + 8*q + 4 + rr}")
            e(f"buffer_store_dwordx4 {v4(V[t] + 4*rr)}, v{vV + rr}, s[{sO}:{sO+3}], s{sT + t} offen {st_flags}".rstrip())
            stores[0] += 1
    g.lab("L_done")
    e("s_endpgm")

    out = HEADER
    out += f"; @launch grid=({G},1,1) block=({64*WPB},1,1) lds=0\n"
    out += '.amdgcn_target "amdgcn-amd-amdhsa--gfx950"\n.text\n'
    out += f".globl {NAME}_kernel\n.p2align 8\n.type {NAME}_kernel,@function\n{NAME}_kernel:\n"
    out += "\n".join(g.lines) + "\n"
    out += f""".section .rodata,"a"
.p2align 6
.amdhsa_kernel {NAME}_kernel
  .amdhsa_next_free_vgpr {total}
  .amdhsa_next_free_sgpr 48
  .amdhsa_accum_offset {accum}
  .amdhsa_group_segment_fixed_size 0
  .amdhsa_kernarg_size 48
  .amdhsa_user_sgpr_count 2
  .amdhsa_user_sgpr_kernarg_segment_ptr 1
  .amdhsa_system_sgpr_workgroup_id_x 1
.end_amdhsa_kernel
"""
    return out, dict(G=G, block=64 * WPB, vgpr=total, accum=accum)


if __name__ == "__main__":
    ap = argparse.ArgumentParser()
    ap.add_argument("-N", type=int, default=2)
    ap.add_argument("--wpb", type=int, default=4)
    ap.add_argument("--ld", default="")
    ap.add_argument("--st", default="")
    ap.add_argument("--noxcd", action="store_true")
    ap.add_argument("--agpr", action="store_true")
    ap.add_argument("-o", default="/dev/stdout")
    a = ap.parse_args()
    s, info = gen(N=a.N, WPB=a.wpb, ld_flags=a.ld, st_flags=a.st, xcd=not a.noxcd, agpr_qk=a.agpr)
    open(a.o, "w").write(s)
    print(info, file=sys.stderr)
```

```python
import sys, argparse

NAME = "standalone__sliding_local_strided__prompt"

HEADER = """; Kernarg layout for this problem (48 bytes, ptrs only, base s[0:1]):
"""


def m0_of_lane(l):
    g = l >> 4
    jl = l & 15
    qj = (jl >> 2) + 4 * (jl & 3)
    return (qj + 4 - g) >> 2


def mask_where(f):
    m = 0
    for l in range(64):
        if f(l):
            m |= 1 << l
    return m


class Gen:
    def __init__(self):
        self.lines = []

    def e(self, s):
        self.lines.append("    " + s)

    def lab(self, s):
        self.lines.append(s + ":")

    def c(self, s):
        self.lines.append("    ; " + s)


def gen(N=2, WPB=4, ld_flags="", st_flags="", xcd=True, agpr_qk=False, st_mode="plain", ldv_flags=None):
    g = Gen()
    e = g.e
    SUB = WPB // 4
    nwaves = 4096 // N
    G = nwaves // WPB
    tiles_per_wg = N * SUB
    vfree = [1]

    def valloc(n, align=2):
        b = (vfree[0] + align - 1) // align * align
        vfree[0] = b + n
        return b
    afree = [0]

    def aalloc(n):
        b = afree[0]
        afree[0] = b + n
        return b

    vQK = valloc(1, 1)
    vV = valloc(4, 1)
    vHK = valloc(1, 1)
    vHV = valloc(2, 1)
    selT = valloc(1, 1); selA = valloc(1, 1); selB = valloc(1, 1)
    sel1 = valloc(1, 1); sel2 = valloc(1, 1); sel3 = valloc(1, 1)
    biasA = valloc(1, 1); biasB = valloc(1, 1)
    tmp = valloc(10, 2)
    Sp = valloc(4, 2); Sc = valloc(4, 2)
    P = valloc(4, 2)
    Vp = valloc(32, 2)
    O = valloc(32, 2)
    if agpr_qk:
        Q = [("a", aalloc(16)) for t in range(N)]
        K = [("a", aalloc(16)) for t in range(N + 1)]
    else:
        Q = [("v", valloc(16, 2)) for t in range(N)]
        K = [("v", valloc(16, 2)) for t in range(N + 1)]
    VH = valloc(8, 2)
    V = [valloc(16, 2) for t in range(N)]
    nv = vfree[0]
    na = afree[0]
    accum = (nv + 3) // 4 * 4
    total = accum + na if na else nv

    def r(t, i, n=4):
        k, b = t
        return f"{k}[{b+i}:{b+i+n-1}]"

    def v4(b):
        return f"v[{b}:{b+3}]"

    sQ, sK, sV, sO = 8, 12, 16, 20
    sBase = 24
    sHalo = 25
    sT = 26
    sPLo, sPHi = 40, 41
    sScale, sLog2e, sHiMask, sBias = 42, 43, 44, 45
    sL, sW = 46, 47

    e(f"s_cmp_ge_u32 s2, {G}")
    e("s_cbranch_scc1 L_done")
    e("s_load_dwordx4 s[28:31], s[0:1], 0")
    e("s_load_dwordx4 s[32:35], s[0:1], 16")
    e("v_lshrrev_b32 v%d, 6, v0" % tmp)
    e("v_and_b32 v0, 63, v0")
    e("v_readfirstlane_b32 s%d, v%d" % (sW, tmp))
    if xcd:
        e(f"s_and_b32 s3, s2, 7")
        e(f"s_lshr_b32 s{sL}, s2, 3")
        e(f"s_mul_i32 s3, s3, {G//8}")
        e(f"s_add_u32 s{sL}, s{sL}, s3")
    else:
        e(f"s_mov_b32 s{sL}, s2")
    t0, t1, t2 = tmp, tmp + 1, tmp + 2
    e(f"v_lshrrev_b32 v{t0}, 4, v0")
    e(f"v_and_b32 v{t1}, 15, v0")
    e(f"v_lshlrev_b32 v{vV}, 10, v{t0}")
    e(f"v_lshl_add_u32 v{vV}, v{t1}, 4, v{vV}")
    e(f"v_lshrrev_b32 v{t2}, 2, v{t1}")
    e(f"v_and_b32 v{vQK}, 3, v{t1}")
    e(f"v_lshl_add_u32 v{vQK}, v{vQK}, 2, v{t2}")
    e(f"v_lshlrev_b32 v{vQK}, 10, v{vQK}")
    e(f"v_lshl_add_u32 v{vQK}, v{t0}, 4, v{vQK}")
    for i in range(1, 4):
        e(f"v_add_u32 v{vV+i}, {4096*i}, v{vV}")
    e(f"s_and_b32 s3, s{sW}, 3")
    e(f"s_lshl_b32 s3, s3, 8")
    if SUB > 1:
        e(f"s_lshr_b32 s{sW}, s{sW}, 2")
        e(f"s_mul_i32 s{sL}, s{sL}, {SUB}")
        e(f"s_add_u32 s{sL}, s{sL}, s{sW}")
    e(f"s_mul_i32 s{sBase}, s{sL}, {N*16384}")
    e(f"s_and_b32 s4, s{sBase}, {524288-1}")
    e(f"s_sub_u32 s{sHalo}, s{sBase}, 16384")
    e(f"s_add_u32 s{sHalo}, s{sHalo}, s3")
    e(f"s_cmp_eq_u32 s4, 0")
    e(f"s_cselect_b32 s{sHalo}, s{sBase}, s{sHalo}")
    e(f"s_cselect_b32 s{sBias}, 0xce6e0000, 0")
    e(f"s_cselect_b32 s5, 0xff, -1")
    e(f"s_add_u32 s{sBase}, s{sBase}, s3")
    e(f"v_and_b32 v{vHK}, s5, v{vQK}")
    e(f"v_and_b32 v{vHV}, s5, v{vV+2}")
    e(f"v_and_b32 v{vHV+1}, s5, v{vV+3}")
    for t in range(N):
        e(f"s_add_u32 s{sT+t}, s{sBase}, {16384*t}") if False else None
    e("s_waitcnt lgkmcnt(0)")
    for (srd, p) in ((sQ, 28), (sK, 30), (sV, 32), (sO, 34)):
        e(f"s_mov_b32 s{srd}, s{p}")
        e(f"s_and_b32 s{srd+1}, s{p+1}, 0xffff")
        e(f"s_mov_b32 s{srd+2}, 0x1000000")
        e(f"s_mov_b32 s{srd+3}, 0x20000")
    sT = 28
    for t in range(N):
        e(f"s_add_u32 s{sT+t}, s{sBase}, {16384*t}")

    loads = []

    def ld(dst, voff, srd, soff, off, tag):
        o = f" offset:{off}" if off else ""
        fl = ld_flags if (tag[0] != "V" or ldv_flags is None) else ldv_flags
        e(f"buffer_load_dwordx4 {dst}, v{voff}, s[{srd}:{srd+3}], s{soff} offen{o} {fl}".rstrip())
        loads.append(tag)

    e("s_mov_b32 exec_lo, 0xcccccccc")
    e("s_mov_b32 exec_hi, 0xcccccccc")
    for kk in range(4):
        ld(r(K[0], 4 * kk), vHK, sK, sHalo, 64 * kk, ("K", -1))
    e("s_mov_b64 exec, -1")
    for t in range(N):
        for kk in range(4):
            ld(r(K[t + 1], 4 * kk), vQK, sK, sT + t, 64 * kk, ("K", t))
        for kk in range(4):
            ld(r(Q[t], 4 * kk), vQK, sQ, sT + t, 64 * kk, ("Q", t))
        if t == 0:
            for i in range(2):
                ld(v4(VH + 4 * i), vHV + i, sV, sHalo, 0, ("V", -1))
        for i in range(4):
            ld(v4(V[t] + 4 * i), vV + i, sV, sT + t, 0, ("V", t))
    nloads = len(loads)

    e(f"s_mov_b32 s{sPLo}, 0x05040100")
    e(f"s_mov_b32 s{sPHi}, 0x07060302")
    e(f"s_mov_b32 s{sScale}, 0x3db504f3")
    e(f"s_mov_b32 s{sLog2e}, 0x3fb8aa3b")
    e(f"s_mov_b32 s{sHiMask}, 0xffff0000")
    tab = {
        selT: [0x03020100, 0x05040302, 0x07060504, 0x07060706, 0x07060706],
        selA: [0x01000c0c] * 4 + [0x05040c0c],
        selB: [0x03020c0c] * 3 + [0x05040c0c, 0x07060c0c],
        sel1: [0x03020100, 0x01000c0c] + [0x0c0c0c0c] * 3,
        sel2: [0x0c0c0c0c, 0x0c0c0302, 0x03020100, 0x01000c0c, 0x0c0c0c0c],
        sel3: [0x0c0c0c0c] * 3 + [0x0c0c0302, 0x03020100],
    }
    for reg, vals in tab.items():
        e(f"v_mov_b32 v{reg}, {vals[2]:#x}")
    e(f"v_mov_b32 v{biasA}, 0")
    e(f"v_mov_b32 v{biasB}, 0")
    for m in (0, 1, 3, 4):
        mk = mask_where(lambda l: m0_of_lane(l) == m)
        e(f"s_mov_b32 exec_lo, {mk & 0xffffffff:#x}")
        e(f"s_mov_b32 exec_hi, {mk >> 32:#x}")
        for reg, vals in tab.items():
            if vals[m] != vals[2]:
                e(f"v_mov_b32 v{reg}, {vals[m]:#x}")
        if m <= 1:
            e(f"v_mov_b32 v{biasA}, s{sBias}")
        if m == 0:
            e(f"v_mov_b32 v{biasB}, s{sBias}")
    e("s_mov_b64 exec, -1")
    for dt in range(8):
        e(f"v_mov_b32 v{Vp + 4*dt + 2}, 0")

    stores = [0]

    def wait_for(tagset):
        last = max(i for i, t in enumerate(loads) if t in tagset)
        n = (nloads - 1 - last) + stores[0]
        assert n <= 63
        e(f"s_waitcnt vmcnt({n})")

    def perm_v(src, slot, halo=False):
        for dt in range(8):
            q = dt >> 1
            sel = sPHi if dt & 1 else sPLo
            if not halo:
                e(f"v_perm_b32 v{Vp + 4*dt + 2*slot}, v{src + 4 + q}, v{src + q}, s{sel}")
                e(f"v_perm_b32 v{Vp + 4*dt + 2*slot + 1}, v{src + 12 + q}, v{src + 8 + q}, s{sel}")
            else:
                e(f"v_perm_b32 v{Vp + 4*dt + 2*slot + 1}, v{src + 4 + q}, v{src + q}, s{sel}")

    for t in range(N):
        g.c(f"---- tile {t} ----")
        wait_for({("K", t), ("Q", t), ("K", t - 1)})
        for kk in range(4):
            c = "0" if kk == 0 else v4(Sp)
            e(f"v_mfma_f32_16x16x32_bf16 {v4(Sp)}, {r(K[t], 4*kk)}, {r(Q[t], 4*kk)}, {c}")
            c = "0" if kk == 0 else v4(Sc)
            e(f"v_mfma_f32_16x16x32_bf16 {v4(Sc)}, {r(K[t+1], 4*kk)}, {r(Q[t], 4*kk)}, {c}")
        X1, X2, X3, T, a, b, m1, m2 = (tmp + i for i in range(8))
        e("s_nop 7")
        e(f"v_cvt_pk_bf16_f32 v{X1}, v{Sp+2}, v{Sp+3}")
        e(f"v_cvt_pk_bf16_f32 v{X2}, v{Sc}, v{Sc+1}")
        e(f"v_cvt_pk_bf16_f32 v{X3}, v{Sc+2}, v{Sc+3}")
        e(f"v_perm_b32 v{T}, v{X2}, v{X1}, v{selT}")
        e(f"v_perm_b32 v{a}, v{X3}, v{T}, v{selA}")
        e(f"v_perm_b32 v{b}, v{X3}, v{T}, v{selB}")
        e(f"v_mul_f32 v{a}, s{sScale}, v{a}")
        e(f"v_mul_f32 v{b}, s{sScale}, v{b}")
        e(f"v_cvt_pk_bf16_f32 v{T}, v{a}, v{b}")
        e(f"v_lshlrev_b32 v{a}, 16, v{T}")
        e(f"v_and_b32 v{b}, s{sHiMask}, v{T}")
        if t == 0:
            e(f"v_add_f32 v{a}, v{a}, v{biasA}")
            e(f"v_add_f32 v{b}, v{b}, v{biasB}")
        e(f"v_max_f32 v{m1}, v{a}, v{b}")
        e(f"v_max_f32 v{m2}, v{a}, v{b}")
        e("s_nop 1")
        e(f"v_permlane32_swap_b32 v{m1}, v{m2}")
        e(f"v_max_f32 v{X1}, v{m1}, v{m2}")
        e(f"v_max_f32 v{X2}, v{m1}, v{m2}")
        e("s_nop 1")
        e(f"v_permlane16_swap_b32 v{X1}, v{X2}")
        e(f"v_max_f32 v{m1}, v{X1}, v{X2}")
        e(f"v_sub_f32 v{a}, v{a}, v{m1}")
        e(f"v_sub_f32 v{b}, v{b}, v{m1}")
        e(f"v_mul_f32 v{a}, s{sLog2e}, v{a}")
        e(f"v_mul_f32 v{b}, s{sLog2e}, v{b}")
        e(f"v_exp_f32 v{a}, v{a}")
        e(f"v_exp_f32 v{b}, v{b}")
        e("s_nop 0")
        e(f"v_add_f32 v{m1}, v{a}, v{b}")
        e(f"v_add_f32 v{m2}, v{a}, v{b}")
        e("s_nop 1")
        e(f"v_permlane32_swap_b32 v{m1}, v{m2}")
        e(f"v_add_f32 v{X1}, v{m1}, v{m2}")
        e(f"v_add_f32 v{X2}, v{m1}, v{m2}")
        e("s_nop 1")
        e(f"v_permlane16_swap_b32 v{X1}, v{X2}")
        e(f"v_add_f32 v{m1}, v{X1}, v{X2}")
        e(f"v_rcp_f32 v{m1}, v{m1}")
        e("s_nop 0")
        e(f"v_mul_f32 v{a}, v{a}, v{m1}")
        e(f"v_mul_f32 v{b}, v{b}, v{m1}")
        e(f"v_cvt_pk_bf16_f32 v{T}, v{a}, v{b}")
        slot = t & 1
        cur, prev = 2 * slot, 2 * (1 - slot)
        e(f"v_mov_b32 v{P + prev}, 0")
        e(f"v_perm_b32 v{P + prev + 1}, v{T}, v{T}, v{sel1}")
        e(f"v_perm_b32 v{P + cur}, v{T}, v{T}, v{sel2}")
        e(f"v_perm_b32 v{P + cur + 1}, v{T}, v{T}, v{sel3}")
        wait_for({("V", t), ("V", t - 1)})
        if t == 0:
            perm_v(VH, 1, halo=True)
        perm_v(V[t], slot)
        e("s_nop 1")
        for dt in range(8):
            e(f"v_mfma_f32_16x16x32_bf16 {v4(O + 4*dt)}, {v4(P)}, {v4(Vp + 4*dt)}, 0")
        e("s_nop 7")
        for rr in range(4):
            for q in range(4):
                e(f"v_cvt_pk_bf16_f32 v{V[t] + 4*rr + q}, v{O + 8*q + rr}, v{O + 8*q + 4 + rr}")
            e(f"buffer_store_dwordx4 {v4(V[t] + 4*rr)}, v{vV + rr}, s[{sO}:{sO+3}], s{sT + t} offen {st_flags}".rstrip())
            stores[0] += 1
    g.lab("L_done")
    e("s_endpgm")

    out = HEADER
    out += f"; @launch grid=({G},1,1) block=({64*WPB},1,1) lds=0\n"
    out += '.amdgcn_target "amdgcn-amd-amdhsa--gfx950"\n.text\n'
    out += f".globl {NAME}_kernel\n.p2align 8\n.type {NAME}_kernel,@function\n{NAME}_kernel:\n"
    out += "\n".join(g.lines) + "\n"
    out += f""".section .rodata,"a"
.p2align 6
.amdhsa_kernel {NAME}_kernel
  .amdhsa_next_free_vgpr {total}
  .amdhsa_next_free_sgpr 48
  .amdhsa_accum_offset {accum}
  .amdhsa_group_segment_fixed_size 0
  .amdhsa_kernarg_size 48
  .amdhsa_user_sgpr_count 2
  .amdhsa_user_sgpr_kernarg_segment_ptr 1
  .amdhsa_system_sgpr_workgroup_id_x 1
.end_amdhsa_kernel
"""
    return out, dict(G=G, block=64 * WPB, vgpr=total, accum=accum)


if __name__ == "__main__":
    ap = argparse.ArgumentParser()
    ap.add_argument("-N", type=int, default=2)
    ap.add_argument("--wpb", type=int, default=4)
    ap.add_argument("--ld", default="")
    ap.add_argument("--st", default="")
    ap.add_argument("--ldv", default=None)
    ap.add_argument("--noxcd", action="store_true")
    ap.add_argument("--agpr", action="store_true")
    ap.add_argument("-o", default="/dev/stdout")
    a = ap.parse_args()
    s, info = gen(N=a.N, WPB=a.wpb, ld_flags=a.ld, st_flags=a.st, xcd=not a.noxcd, agpr_qk=a.agpr, ldv_flags=a.ldv)
    open(a.o, "w").write(s)
    print(info, file=sys.stderr)
```

```python
import sys, argparse

NAME = "standalone__sliding_local_strided__prompt"

HEADER = """; Kernarg layout for this problem (48 bytes, ptrs only, base s[0:1]):
"""


def m0_of_lane(l):
    g = l >> 4
    jl = l & 15
    qj = (jl >> 2) + 4 * (jl & 3)
    return (qj + 4 - g) >> 2


def mask_where(f):
    m = 0
    for l in range(64):
        if f(l):
            m |= 1 << l
    return m


class Gen:
    def __init__(self):
        self.lines = []

    def e(self, s):
        self.lines.append("    " + s)

    def lab(self, s):
        self.lines.append(s + ":")

    def c(self, s):
        self.lines.append("    ; " + s)


def gen(N=2, WPB=4, ld_flags="", st_flags="", xcd=True, agpr_qk=False, st_mode="plain", ldv_flags=None, order="tile", nocompute=False, nohalo=False, stamp=False):
    g = Gen()
    e = g.e
    SUB = WPB // 4
    nwaves = 4096 // N
    G = nwaves // WPB
    tiles_per_wg = N * SUB
    vfree = [1]

    def valloc(n, align=2):
        b = (vfree[0] + align - 1) // align * align
        vfree[0] = b + n
        return b
    afree = [0]

    def aalloc(n):
        b = afree[0]
        afree[0] = b + n
        return b

    vQK = valloc(1, 1)
    vV = valloc(4, 1)
    vHK = valloc(1, 1)
    vHV = valloc(2, 1)
    selT = valloc(1, 1); selA = valloc(1, 1); selB = valloc(1, 1)
    sel1 = valloc(1, 1); sel2 = valloc(1, 1); sel3 = valloc(1, 1)
    biasA = valloc(1, 1); biasB = valloc(1, 1)
    tmp = valloc(10, 2)
    Sp = valloc(4, 2); Sc = valloc(4, 2)
    P = valloc(4, 2)
    Vp = valloc(32, 2)
    O = valloc(32, 2)
    if agpr_qk:
        Q = [("a", aalloc(16)) for t in range(N)]
        K = [("a", aalloc(16)) for t in range(N + 1)]
    else:
        Q = [("v", valloc(16, 2)) for t in range(N)]
        K = [("v", valloc(16, 2)) for t in range(N + 1)]
    VH = valloc(8, 2)
    V = [valloc(16, 2) for t in range(N)]
    nv = vfree[0]
    na = afree[0]
    accum = (nv + 3) // 4 * 4
    total = accum + na if na else nv

    def r(t, i, n=4):
        k, b = t
        return f"{k}[{b+i}:{b+i+n-1}]"

    def v4(b):
        return f"v[{b}:{b+3}]"

    sQ, sK, sV, sO = 8, 12, 16, 20
    sBase = 24
    sHalo = 25
    sT = 26
    sPLo, sPHi = 40, 41
    sScale, sLog2e, sHiMask, sBias = 42, 43, 44, 45
    sL, sW = 46, 47

    e(f"s_cmp_ge_u32 s2, {G}")
    e("s_cbranch_scc1 L_done")
    if stamp:
        e("s_memrealtime s[50:51]")
        e("s_load_dwordx2 s[48:49], s[0:1], 40")
    e("s_load_dwordx4 s[28:31], s[0:1], 0")
    e("s_load_dwordx4 s[32:35], s[0:1], 16")
    e("v_lshrrev_b32 v%d, 6, v0" % tmp)
    e("v_lshrrev_b32 v%d, 6, v0" % (tmp+9))
    e("v_and_b32 v0, 63, v0")
    e("v_readfirstlane_b32 s%d, v%d" % (sW, tmp))
    if xcd:
        e(f"s_and_b32 s3, s2, 7")
        e(f"s_lshr_b32 s{sL}, s2, 3")
        e(f"s_mul_i32 s3, s3, {G//8}")
        e(f"s_add_u32 s{sL}, s{sL}, s3")
    else:
        e(f"s_mov_b32 s{sL}, s2")
    t0, t1, t2 = tmp, tmp + 1, tmp + 2
    e(f"v_lshrrev_b32 v{t0}, 4, v0")
    e(f"v_and_b32 v{t1}, 15, v0")
    e(f"v_lshlrev_b32 v{vV}, 10, v{t0}")
    e(f"v_lshl_add_u32 v{vV}, v{t1}, 4, v{vV}")
    e(f"v_lshrrev_b32 v{t2}, 2, v{t1}")
    e(f"v_and_b32 v{vQK}, 3, v{t1}")
    e(f"v_lshl_add_u32 v{vQK}, v{vQK}, 2, v{t2}")
    e(f"v_lshlrev_b32 v{vQK}, 10, v{vQK}")
    e(f"v_lshl_add_u32 v{vQK}, v{t0}, 4, v{vQK}")
    for i in range(1, 4):
        e(f"v_add_u32 v{vV+i}, {4096*i}, v{vV}")
    e(f"s_and_b32 s3, s{sW}, 3")
    e(f"s_lshl_b32 s3, s3, 8")
    if SUB > 1:
        e(f"s_lshr_b32 s{sW}, s{sW}, 2")
        e(f"s_mul_i32 s{sL}, s{sL}, {SUB}")
        e(f"s_add_u32 s{sL}, s{sL}, s{sW}")
    e(f"s_mul_i32 s{sBase}, s{sL}, {N*16384}")
    e(f"s_and_b32 s4, s{sBase}, {524288-1}")
    e(f"s_sub_u32 s{sHalo}, s{sBase}, 16384")
    e(f"s_add_u32 s{sHalo}, s{sHalo}, s3")
    e(f"s_cmp_eq_u32 s4, 0")
    e(f"s_cselect_b32 s{sHalo}, s{sBase}, s{sHalo}")
    e(f"s_cselect_b32 s{sBias}, 0xce6e0000, 0")
    e(f"s_cselect_b32 s5, 0xff, -1")
    e(f"s_add_u32 s{sBase}, s{sBase}, s3")
    e(f"v_and_b32 v{vHK}, s5, v{vQK}")
    e(f"v_and_b32 v{vHV}, s5, v{vV+2}")
    e(f"v_and_b32 v{vHV+1}, s5, v{vV+3}")
    for t in range(N):
        e(f"s_add_u32 s{sT+t}, s{sBase}, {16384*t}") if False else None
    e("s_waitcnt lgkmcnt(0)")
    if stamp:
        e("s_memrealtime s[52:53]")
        e(f"s_mul_i32 s64, s2, {WPB}")
        e(f"v_readfirstlane_b32 s65, v{tmp+9}")
    for (srd, p) in ((sQ, 28), (sK, 30), (sV, 32), (sO, 34)):
        e(f"s_mov_b32 s{srd}, s{p}")
        e(f"s_and_b32 s{srd+1}, s{p+1}, 0xffff")
        e(f"s_mov_b32 s{srd+2}, 0x1000000")
        e(f"s_mov_b32 s{srd+3}, 0x20000")
    sT = 28
    for t in range(N):
        e(f"s_add_u32 s{sT+t}, s{sBase}, {16384*t}")

    loads = []

    def ld(dst, voff, srd, soff, off, tag):
        o = f" offset:{off}" if off else ""
        fl = ld_flags if (tag[0] != "V" or ldv_flags is None) else ldv_flags
        e(f"buffer_load_dwordx4 {dst}, v{voff}, s[{srd}:{srd+3}], s{soff} offen{o} {fl}".rstrip())
        loads.append(tag)

    e("s_mov_b32 exec_lo, 0xcccccccc")
    e("s_mov_b32 exec_hi, 0xcccccccc")
    for kk in range(4):
        if not nohalo: ld(r(K[0], 4 * kk), vHK, sK, sHalo, 64 * kk, ("K", -1))
    e("s_mov_b64 exec, -1")
    def ldK(t):
        for kk in range(4):
            ld(r(K[t + 1], 4 * kk), vQK, sK, sT + t, 64 * kk, ("K", t))
    def ldQ(t):
        for kk in range(4):
            ld(r(Q[t], 4 * kk), vQK, sQ, sT + t, 64 * kk, ("Q", t))
    def ldV(t):
        if t == 0 and not nohalo:
            for i in range(2):
                ld(v4(VH + 4 * i), vHV + i, sV, sHalo, 0, ("V", -1))
        for i in range(4):
            ld(v4(V[t] + 4 * i), vV + i, sV, sT + t, 0, ("V", t))
    if order == "tile":
        for t in range(N):
            ldK(t); ldQ(t); ldV(t)
    elif order == "tensor":
        for t in range(N): ldK(t)
        for t in range(N): ldQ(t)
        for t in range(N): ldV(t)
    elif order == "skew":
        for t in range(N + 2):
            if t < N: ldK(t)
            if 0 <= t - 1 < N: ldQ(t - 1)
            if 0 <= t - 2 < N: ldV(t - 2)
    nloads = len(loads)
    if stamp:
        e("s_memrealtime s[54:55]")

    e(f"s_mov_b32 s{sPLo}, 0x05040100")
    e(f"s_mov_b32 s{sPHi}, 0x07060302")
    e(f"s_mov_b32 s{sScale}, 0x3db504f3")
    e(f"s_mov_b32 s{sLog2e}, 0x3fb8aa3b")
    e(f"s_mov_b32 s{sHiMask}, 0xffff0000")
    tab = {
        selT: [0x03020100, 0x05040302, 0x07060504, 0x07060706, 0x07060706],
        selA: [0x01000c0c] * 4 + [0x05040c0c],
        selB: [0x03020c0c] * 3 + [0x05040c0c, 0x07060c0c],
        sel1: [0x03020100, 0x01000c0c] + [0x0c0c0c0c] * 3,
        sel2: [0x0c0c0c0c, 0x0c0c0302, 0x03020100, 0x01000c0c, 0x0c0c0c0c],
        sel3: [0x0c0c0c0c] * 3 + [0x0c0c0302, 0x03020100],
    }
    for reg, vals in tab.items():
        e(f"v_mov_b32 v{reg}, {vals[2]:#x}")
    e(f"v_mov_b32 v{biasA}, 0")
    e(f"v_mov_b32 v{biasB}, 0")
    for m in (0, 1, 3, 4):
        mk = mask_where(lambda l: m0_of_lane(l) == m)
        e(f"s_mov_b32 exec_lo, {mk & 0xffffffff:#x}")
        e(f"s_mov_b32 exec_hi, {mk >> 32:#x}")
        for reg, vals in tab.items():
            if vals[m] != vals[2]:
                e(f"v_mov_b32 v{reg}, {vals[m]:#x}")
        if m <= 1:
            e(f"v_mov_b32 v{biasA}, s{sBias}")
        if m == 0:
            e(f"v_mov_b32 v{biasB}, s{sBias}")
    e("s_mov_b64 exec, -1")
    for dt in range(8):
        e(f"v_mov_b32 v{Vp + 4*dt + 2}, 0")

    stores = [0]

    def wait_for(tagset):
        last = max(i for i, t in enumerate(loads) if t in tagset)
        n = (nloads - 1 - last) + stores[0]
        assert n <= 63
        e(f"s_waitcnt vmcnt({n})")

    def perm_v(src, slot, halo=False):
        for dt in range(8):
            q = dt >> 1
            sel = sPHi if dt & 1 else sPLo
            if not halo:
                e(f"v_perm_b32 v{Vp + 4*dt + 2*slot}, v{src + 4 + q}, v{src + q}, s{sel}")
                e(f"v_perm_b32 v{Vp + 4*dt + 2*slot + 1}, v{src + 12 + q}, v{src + 8 + q}, s{sel}")
            else:
                e(f"v_perm_b32 v{Vp + 4*dt + 2*slot + 1}, v{src + 4 + q}, v{src + q}, s{sel}")

    for t in range(N):
        g.c(f"---- tile {t} ----")
        wait_for({("K", t), ("Q", t), ("K", t - 1)})
        if stamp and t == 0:
            e("s_memrealtime s[56:57]")
        if nocompute:
            wait_for({("V", t), ("V", t - 1)})
            for rr in range(4):
                e(f"buffer_store_dwordx4 {v4(V[t] + 4*rr)}, v{vV + rr}, s[{sO}:{sO+3}], s{sT + t} offen {st_flags}".rstrip())
                stores[0] += 1
            continue
        for kk in range(4):
            c = "0" if kk == 0 else v4(Sp)
            e(f"v_mfma_f32_16x16x32_bf16 {v4(Sp)}, {r(K[t], 4*kk)}, {r(Q[t], 4*kk)}, {c}")
            c = "0" if kk == 0 else v4(Sc)
            e(f"v_mfma_f32_16x16x32_bf16 {v4(Sc)}, {r(K[t+1], 4*kk)}, {r(Q[t], 4*kk)}, {c}")
        X1, X2, X3, T, a, b, m1, m2 = (tmp + i for i in range(8))
        e("s_nop 7")
        e(f"v_cvt_pk_bf16_f32 v{X1}, v{Sp+2}, v{Sp+3}")
        e(f"v_cvt_pk_bf16_f32 v{X2}, v{Sc}, v{Sc+1}")
        e(f"v_cvt_pk_bf16_f32 v{X3}, v{Sc+2}, v{Sc+3}")
        e(f"v_perm_b32 v{T}, v{X2}, v{X1}, v{selT}")
        e(f"v_perm_b32 v{a}, v{X3}, v{T}, v{selA}")
        e(f"v_perm_b32 v{b}, v{X3}, v{T}, v{selB}")
        e(f"v_mul_f32 v{a}, s{sScale}, v{a}")
        e(f"v_mul_f32 v{b}, s{sScale}, v{b}")
        e(f"v_cvt_pk_bf16_f32 v{T}, v{a}, v{b}")
        e(f"v_lshlrev_b32 v{a}, 16, v{T}")
        e(f"v_and_b32 v{b}, s{sHiMask}, v{T}")
        if t == 0:
            e(f"v_add_f32 v{a}, v{a}, v{biasA}")
            e(f"v_add_f32 v{b}, v{b}, v{biasB}")
        e(f"v_max_f32 v{m1}, v{a}, v{b}")
        e(f"v_max_f32 v{m2}, v{a}, v{b}")
        e("s_nop 1")
        e(f"v_permlane32_swap_b32 v{m1}, v{m2}")
        e(f"v_max_f32 v{X1}, v{m1}, v{m2}")
        e(f"v_max_f32 v{X2}, v{m1}, v{m2}")
        e("s_nop 1")
        e(f"v_permlane16_swap_b32 v{X1}, v{X2}")
        e(f"v_max_f32 v{m1}, v{X1}, v{X2}")
        e(f"v_sub_f32 v{a}, v{a}, v{m1}")
        e(f"v_sub_f32 v{b}, v{b}, v{m1}")
        e(f"v_mul_f32 v{a}, s{sLog2e}, v{a}")
        e(f"v_mul_f32 v{b}, s{sLog2e}, v{b}")
        e(f"v_exp_f32 v{a}, v{a}")
        e(f"v_exp_f32 v{b}, v{b}")
        e("s_nop 0")
        e(f"v_add_f32 v{m1}, v{a}, v{b}")
        e(f"v_add_f32 v{m2}, v{a}, v{b}")
        e("s_nop 1")
        e(f"v_permlane32_swap_b32 v{m1}, v{m2}")
        e(f"v_add_f32 v{X1}, v{m1}, v{m2}")
        e(f"v_add_f32 v{X2}, v{m1}, v{m2}")
        e("s_nop 1")
        e(f"v_permlane16_swap_b32 v{X1}, v{X2}")
        e(f"v_add_f32 v{m1}, v{X1}, v{X2}")
        e(f"v_rcp_f32 v{m1}, v{m1}")
        e("s_nop 0")
        e(f"v_mul_f32 v{a}, v{a}, v{m1}")
        e(f"v_mul_f32 v{b}, v{b}, v{m1}")
        e(f"v_cvt_pk_bf16_f32 v{T}, v{a}, v{b}")
        slot = t & 1
        cur, prev = 2 * slot, 2 * (1 - slot)
        e(f"v_mov_b32 v{P + prev}, 0")
        e(f"v_perm_b32 v{P + prev + 1}, v{T}, v{T}, v{sel1}")
        e(f"v_perm_b32 v{P + cur}, v{T}, v{T}, v{sel2}")
        e(f"v_perm_b32 v{P + cur + 1}, v{T}, v{T}, v{sel3}")
        wait_for({("V", t), ("V", t - 1)})
        if t == 0:
            perm_v(VH, 1, halo=True)
        perm_v(V[t], slot)
        e("s_nop 1")
        for dt in range(8):
            e(f"v_mfma_f32_16x16x32_bf16 {v4(O + 4*dt)}, {v4(P)}, {v4(Vp + 4*dt)}, 0")
        e("s_nop 7")
        for rr in range(4):
            for q in range(4):
                e(f"v_cvt_pk_bf16_f32 v{V[t] + 4*rr + q}, v{O + 8*q + rr}, v{O + 8*q + 4 + rr}")
            e(f"buffer_store_dwordx4 {v4(V[t] + 4*rr)}, v{vV + rr}, s[{sO}:{sO+3}], s{sT + t} offen {st_flags}".rstrip())
            stores[0] += 1
    if stamp:
        e("s_memrealtime s[58:59]")
        e("s_waitcnt vmcnt(0)")
        e("s_memrealtime s[60:61]")
        e("s_getreg_b32 s62, hwreg(HW_REG_XCC_ID)")
        e("s_getreg_b32 s63, hwreg(HW_REG_HW_ID)")
        e("s_waitcnt lgkmcnt(0)")
        e("s_add_u32 s3, s64, s65"); e("s_lshl_b32 s3, s3, 5")
        e("s_mov_b32 s36, s48"); e("s_and_b32 s37, s49, 0xffff"); e("s_mov_b32 s38, 0x1000000"); e("s_mov_b32 s39, 0x20000")
        for k,sr in enumerate((50,52,54,56,58,60,62,63)): e(f"v_mov_b32 v{8+k}, s{sr}")
        e("v_mov_b32 v1, 0")
        e("s_mov_b64 exec, 1")
        e("buffer_store_dwordx4 v[8:11], v1, s[36:39], s3 offen"); e("buffer_store_dwordx4 v[12:15], v1, s[36:39], s3 offen offset:16")
    g.lab("L_done")
    e("s_endpgm")

    out = HEADER
    out += f"; @launch grid=({G},1,1) block=({64*WPB},1,1) lds=0\n"
    out += '.amdgcn_target "amdgcn-amd-amdhsa--gfx950"\n.text\n'
    out += f".globl {NAME}_kernel\n.p2align 8\n.type {NAME}_kernel,@function\n{NAME}_kernel:\n"
    out += "\n".join(g.lines) + "\n"
    out += f""".section .rodata,"a"
.p2align 6
.amdhsa_kernel {NAME}_kernel
  .amdhsa_next_free_vgpr {total}
  .amdhsa_next_free_sgpr 72
  .amdhsa_accum_offset {accum}
  .amdhsa_group_segment_fixed_size 0
  .amdhsa_kernarg_size 48
  .amdhsa_user_sgpr_count 2
  .amdhsa_user_sgpr_kernarg_segment_ptr 1
  .amdhsa_system_sgpr_workgroup_id_x 1
.end_amdhsa_kernel
"""
    return out, dict(G=G, block=64 * WPB, vgpr=total, accum=accum)


if __name__ == "__main__":
    ap = argparse.ArgumentParser()
    ap.add_argument("-N", type=int, default=2)
    ap.add_argument("--wpb", type=int, default=4)
    ap.add_argument("--ld", default="")
    ap.add_argument("--st", default="")
    ap.add_argument("--nocompute", action="store_true")
    ap.add_argument("--nohalo", action="store_true")
    ap.add_argument("--stamp", action="store_true")
    ap.add_argument("--order", default="tile")
    ap.add_argument("--ldv", default=None)
    ap.add_argument("--noxcd", action="store_true")
    ap.add_argument("--agpr", action="store_true")
    ap.add_argument("-o", default="/dev/stdout")
    a = ap.parse_args()
    s, info = gen(N=a.N, WPB=a.wpb, ld_flags=a.ld, st_flags=a.st, xcd=not a.noxcd, agpr_qk=a.agpr, ldv_flags=a.ldv, order=a.order, nocompute=a.nocompute, nohalo=a.nohalo, stamp=a.stamp)
    open(a.o, "w").write(s)
    print(info, file=sys.stderr)
```

```python
import sys
from gen1 import HEADER, NAME, m0_of_lane, mask_where


def gen(ld="nt", st="nt", swz="quad", stamp=False, hk=4, hv=0, rot=None, rots=None,
        sync="bar", order="kqv", hld=None, pk=True, halo7=False, stamp2=False, sig="v3", split=False, pipeS=False, lateC=False, rott=None, trev=False, ibar="start", phase="", prio=None, pat="lo", win=0, pre3=False, gfirst=True, stl=None, gate=0, rpart="kqv", resx=None, nohalo="", pvvar=None, extra=0, dlyodd=0, cap=0, diag=None, dk=2, dw=0, own=False, avg=False, touch="", tpos=0, arot=None, arotv=True, fast=None):
    N, WPB = 4, 4
    L = []
    e = lambda s: L.append("    " + s.rstrip())
    lab = lambda s: L.append(s + ":")
    com = lambda s: L.append("    ; " + s)
    if hld is None:
        hld = ld
    G = 256
    QB = 0
    KH = N * 4096
    KB = KH + 2048
    WLDS = KB + N * 4096
    LDS = WLDS * WPB + (64 if sync == "flag" else 0)
    FLAG = WLDS * WPB

    vfree = [1]

    def valloc(n, align=2):
        b = (vfree[0] + align - 1) // align * align
        vfree[0] = b + n
        return b

    vD = valloc(4, 1)
    vV = valloc(4, 1)
    vHK = valloc(2, 1)
    vHV = valloc(2, 1)
    vR = valloc(4, 1)
    vF = valloc(2, 1)
    vL = valloc(4, 1) if arot else None
    vE = valloc(2, 1) if arot else None
    selT = valloc(1, 1); selA = valloc(1, 1); selB = valloc(1, 1)
    sel1 = valloc(1, 1); sel2 = valloc(1, 1); sel3 = valloc(1, 1)
    biasA = valloc(1, 1); biasB = valloc(1, 1)
    PW = valloc(4, 2)
    P = [valloc(4, 2) for _ in range(2)]
    Vp = valloc(32, 2)
    O = [valloc(32, 2) for _ in range(3 if lateC else 2)]
    tmp = O[0]
    assert not (lateC and sync != "bar")
    VH = valloc(8, 2)
    V = [valloc(16, 2) for _ in range(N)]
    nv = vfree[0]
    accum = (nv + 3) // 4 * 4
    KF = [16 * i for i in range(5)]
    QF = [80 + 16 * i for i in range(4)]
    na = 148 if extra else 144
    total = accum + na
    Sp = [O[-1] + 8 * t for t in range(4)]
    Sc = [O[-1] + 8 * t + 4 for t in range(4)]
    OI = (lambda t: t % 3) if lateC else (lambda t: t & 1)

    v4 = lambda b: f"v[{b}:{b+3}]"
    v2 = lambda b: f"v[{b}:{b+1}]"
    a4 = lambda b: f"a[{b}:{b+3}]"

    sQ, sK, sV, sO = 8, 12, 16, 20
    sBase, sHalo = 24, 25
    sT = 26
    sLds, sX, sXs = 36, 37, 38
    sPLo, sPHi = 40, 41
    sScale, sHiMask, sBias = 42, 43, 30
    sLog2e = 44
    sL, sW = 46, 47

    if gfirst:
        e(f"s_cmp_ge_u32 s2, {G}")
        e("s_cbranch_scc1 L_done")
    if stamp:
        e("s_memrealtime s[50:51]")
        e("s_memtime s[68:69]")
        e("s_load_dwordx2 s[48:49], s[0:1], 40")
    first_srd = dict(k=sK, q=sQ, v=sV)[order[0]]
    for srd, off in sorted(((sK, 8), (sQ, 0), (sV, 16), (sO, 24)), key=lambda x: x[0] != first_srd):
        e(f"s_load_dwordx2 s[{srd}:{srd+1}], s[0:1], {off}")
    if diag:
        e("s_memrealtime s[48:49]")
        e("s_load_dwordx2 s[52:53], s[0:1], 32")
    if gate:
        e("s_memrealtime s[32:33]")
    if not gfirst:
        e(f"s_cmp_ge_u32 s2, {G}")
        e("s_cbranch_scc1 L_done")
    t0, t1, t2, t3 = tmp, tmp + 1, tmp + 2, tmp + 3
    late = []
    if fast is not None:
        assert pat == "hi" and not arot and order[0] == "k" and hk != 0 and sync != "flag" and rot in (None, "ba")
        e(f"v_lshrrev_b32 v{t2}, 6, v0")
        e(f"v_bfe_u32 v{t0}, v0, 4, 2")
        e(f"v_readfirstlane_b32 s{sW}, v{t2}")
        e(f"v_and_b32 v{t1}, 15, v0")
        e(f"v_mul_u32_u24 v{t3}, {4096+64}, v{t0}")
        e(f"v_lshlrev_b32 v{t1}, 4, v{t1}")
        e(f"s_and_b32 s3, s2, 7")
        e(f"s_lshr_b32 s4, s2, 3")
        e(f"v_xor_b32 v{vD}, v{t3}, v{t1}")
        e(f"s_lshl_b32 s3, s3, 21")
        e(f"s_lshl_b32 s{sBase}, s4, 16")
        e(f"s_mov_b32 s{sK+2}, 0x1000000")
        e(f"s_mov_b32 s{sK+3}, 0x20000")
        e(f"s_or_b32 s{sBase}, s{sBase}, s3")
        e(f"s_lshl_b32 s3, s{sW}, 8")
        e(f"s_mul_i32 s{sLds}, s{sW}, {WLDS}")
        e(f"s_add_u32 s{sT}, s{sBase}, s3")
        l = late.append
        l(f"v_and_b32 v0, 63, v0")
        l(f"v_lshl_add_u32 v{vV}, v{t0}, 10, v{t1}")
        for i in range(1, 4):
            l(f"v_add_u32 v{vV+i}, {4096*i}, v{vV}")
        l(f"v_and_b32 v{t3}, 1, v{t0}")
        l(f"v_or_b32 v{t3}, 2, v{t3}")
        l(f"v_mul_u32_u24 v{t3}, {4096+64}, v{t3}")
        l(f"v_xor_b32 v{t3}, v{t3}, v{t1}")
        l(f"v_lshrrev_b32 v{t2}, 1, v{t0}")
        l(f"v_lshl_add_u32 v{vHK}, v{t2}, 10, v{t3}")
        l(f"v_add_u32 v{vHK+1}, 2048, v{vHK}")
        for srd in (sQ, sV, sO):
            l(f"s_mov_b32 s{srd+2}, 0x1000000")
            l(f"s_mov_b32 s{srd+3}, 0x20000")
        l(f"s_sub_u32 s{sHalo}, s{sT}, 16384")
        l(f"s_and_b32 s4, s4, 7")
        l(f"s_cselect_b32 s{sHalo}, s{sHalo}, s{sBase}")
        l(f"s_cselect_b32 s{sBias}, 0, 0xce6e0000")
        l(f"s_cselect_b32 s5, -1, 0xff")
        for i in range(2):
            l(f"v_and_b32 v{vHK+i}, s5, v{vHK+i}")
            l(f"v_and_b32 v{vHV+i}, s5, v{vV+2+i}")
    else:
        e(f"v_lshrrev_b32 v{t2}, 6, v0")
        e("v_and_b32 v0, 63, v0")
        e(f"v_readfirstlane_b32 s{sW}, v{t2}")
        if prio == "fwd":
            e("s_setprio 3")
            for w in range(1, 4):
                e(f"s_cmp_lt_u32 s{sW}, {w}")
                e(f"s_cbranch_scc1 L_prio")
                e(f"s_setprio {3-w}")
            lab("L_prio")
        if prio == "pair":
            e(f"s_cmp_ge_u32 s{sW}, 2")
            e(f"s_cbranch_scc1 L_prio")
            e("s_setprio 1")
            lab("L_prio")
        if prio == "rev":
            for w in range(1, 4):
                e(f"s_cmp_lt_u32 s{sW}, {w}")
                e(f"s_cbranch_scc1 L_prio")
                e(f"s_setprio {w}")
            lab("L_prio")
        for srd in (sQ, sK, sV, sO):
            e(f"s_mov_b32 s{srd+2}, {0x1001000 if (arot and srd in (sQ, sK)) else 0x1000000:#x}")
            e(f"s_mov_b32 s{srd+3}, 0x20000")
        e(f"s_and_b32 s3, s2, 7")
        e(f"s_lshr_b32 s{sL}, s2, 3")
        e(f"s_lshl_b32 s3, s3, 5")
        e(f"s_add_u32 s{sL}, s{sL}, s3")
        if arot:
            assert arot == "ba" and pat == "hi"
            e(f"s_lshl_b32 s3, s{sW}, 1")
            e(f"s_lshr_b32 s4, s{sW}, 1")
            e(f"s_and_b32 s3, s3, 2")
            e(f"s_or_b32 s{sX}, s3, s4")
            e(f"s_lshl_b32 s6, s{sX}, 10")
            e(f"s_lshl_b32 s7, s{sX}, 12")
        e(f"v_lshrrev_b32 v{t0}, 4, v0")
        e(f"v_and_b32 v{t1}, 15, v0")
        e(f"v_lshlrev_b32 v{t2}, 10, v{t0}")
        e(f"v_lshl_add_u32 v{vV}, v{t1}, 4, v{t2}")
        for i in range(1, 4):
            e(f"v_add_u32 v{vV+i}, {4096*i}, v{vV}")
        if pat == "hi":
            e(f"v_lshlrev_b32 v{t3}, 6, v{t0}")
            e(f"v_lshl_add_u32 v{t3}, v{t0}, 12, v{t3}")
            e(f"v_lshlrev_b32 v{t2}, 4, v{t1}")
            e(f"v_xor_b32 v{vD}, v{t3}, v{t2}")
            if arot:
                for i in (3, 2, 1, 0):
                    e(f"s_xor_b32 s3, s6, {1024*i}")
                    e(f"s_add_u32 s3, s3, {4096 - 1024*i}")
                    e(f"v_add_u32 v{vD+i}, s3, v{vD}")
                for i in range(4):
                    if arotv:
                        e(f"v_xor_b32 v{vL+i}, s7, v{vV+i}")
            e(f"v_and_b32 v{t3}, 1, v{t0}")
            e(f"v_or_b32 v{t3}, 2, v{t3}")
            e(f"v_mul_u32_u24 v{t3}, {4096+64}, v{t3}")
            e(f"v_xor_b32 v{t3}, v{t3}, v{t2}")
            e(f"v_lshrrev_b32 v{t2}, 1, v{t0}")
            e(f"v_lshl_add_u32 v{vHK}, v{t2}, 10, v{t3}")
            e(f"v_add_u32 v{vHK+1}, 2048, v{vHK}")
        elif swz == "full":
            e(f"v_lshlrev_b32 v{t3}, 6, v{t0}")
            e(f"v_xor_b32 v{vD}, v{vV}, v{t3}")
            for i in range(1, 4):
                e(f"v_xor_b32 v{vD+i}, {16*i}, v{vD}")
                e(f"v_add_u32 v{vD+i}, {3072*i}, v{vD+i}")
        else:
            e(f"v_mov_b32 v{vD}, v{vV}")
            for i in range(1, 4):
                e(f"v_xor_b32 v{vD+i}, {64*i}, v{vV}")
                e(f"v_add_u32 v{vD+i}, {3072*i}, v{vD+i}")
        e(f"s_mul_i32 s{sLds}, s{sW}, {WLDS}")
        if resx:
            e(f"s_mov_b32 s3, s{sW}")
            for j, ch in enumerate(resx):
                if ch == '-':
                    continue
                e(f"s_bfe_u32 s4, s{sL}, {(1 << 16) | int(ch):#x}")
                if j:
                    e(f"s_lshl_b32 s4, s4, {j}")
                e(f"s_xor_b32 s3, s3, s4")
            e(f"s_lshl_b32 s3, s3, 8")
        else:
            e(f"s_lshl_b32 s3, s{sW}, 8")
        e(f"s_lshl_b32 s{sBase}, s{sL}, 16")
        e(f"s_add_u32 s{sT}, s{sBase}, s3")
        e(f"s_sub_u32 s{sHalo}, s{sT}, 16384")
        e(f"s_and_b32 s4, s{sL}, 7")
        e(f"s_cselect_b32 s{sHalo}, s{sHalo}, s{sBase}")
        e(f"s_cselect_b32 s{sBias}, 0, 0xce6e0000")
        e(f"s_cselect_b32 s5, -1, 0xff")
        for t in range(1, N):
            e(f"s_add_u32 s{sT+t}, s{sT}, {16384*t}")
        for i in range(2):
            if pat != "hi":
                e(f"v_add_u32 v{vHK+i}, {1024*(2+i)}, v{vD+2+i}")
            e(f"v_and_b32 v{vHK+i}, s5, v{vHK+i}")
            if arot:
                e(f"v_add_u32 v{vHK+i}, 4096, v{vHK+i}")
            if arot and arotv:
                if i == 0:
                    e(f"s_and_b32 s7, s7, 4096")
                e(f"v_xor_b32 v{vHV+i}, s7, v{vV+2+i}")
                e(f"v_and_b32 v{vHV+i}, s5, v{vHV+i}")
            else:
                e(f"v_and_b32 v{vHV+i}, s5, v{vV+2+i}")
        for spec, sreg in ((rot, sX), (pvvar or rott or rots, sXs)):
            if spec:
                e(f"s_mov_b32 s{sreg}, 0")
                for j, ch in enumerate(spec[:2]):
                    if ch == '-':
                        continue
                    src, bit = (f"s{sW}", 'ab'.index(ch)) if ch in 'ab' else (f"s{sL}", int(ch))
                    e(f"s_bfe_u32 s3, {src}, {(1 << 16) | bit:#x}")
                    e(f"s_lshl_b32 s3, s3, {j}")
                    e(f"s_or_b32 s{sreg}, s{sreg}, s3")
        if sync == "flag":
            e(f"v_mov_b32 v{vF}, {FLAG}")
            e(f"v_mov_b32 v{vF+1}, 0")
            e(f"ds_write_b32 v{vF}, v{vF+1}")
            e(f"v_mov_b32 v{vF+1}, 1")


    def signal(where):
        if sync == "flag" and sig == where:
            e("s_mov_b64 exec, 1")
            e(f"ds_add_u32 v{vF}, v{vF+1}")
            e("s_mov_b64 exec, -1")

    ops = []
    X = [0]
    m0set = [None]

    def setm0(off):
        if m0set[0] != off:
            e(f"s_add_u32 m0, s{sLds}, {off}")
            e("s_nop 0")
            m0set[0] = off

    def dma(voff, srd, soff, off, tag):
        o = f" offset:{off}" if off else ""
        fl = hld if tag[1] < 0 else ld
        if cap and len(ops) >= cap: e(f"s_waitcnt vmcnt({cap-1})")
        e(f"buffer_load_dwordx4 v{voff}, s[{srd}:{srd+3}], s{soff} offen{o} {fl} lds")
        ops.append(tag)

    def ldK(t):
        if t < 0 and "k" in nohalo:
            return
        if t < 0:
            for i in range(2):
                setm0(KH + 1024 * i)
                if halo7 and i == 0: e("s_mov_b32 exec_lo, 0xffff0000")
                dma(vHK + i, sK, sHalo, 0, ("K", -1))
                if halo7 and i == 0: e("s_mov_b32 exec_lo, -1")
            return
        if fast is not None and t > 0:
            e(f"s_add_u32 m0, s{sLds}, {KB + 4096*t}")
            e(f"s_add_u32 s{sT+t}, s{sT}, {16384*t}")
            m0set[0] = KB + 4096 * t
        setm0(KB + 4096 * t)
        for i0 in range(4):
            i = i0 ^ X[0]
            dma(vD + (0 if (pat == "hi" and not arot) else i), sK, sT + t, 1024 * i, ("K", t))

    def ldQ(t):
        if arot and t == 0:
            e(f"s_sub_u32 s{sQ}, s{sQ}, 4096")
            e(f"s_subb_u32 s{sQ+1}, s{sQ+1}, 0")
        setm0(QB + 4096 * t)
        for i0 in range(4):
            i = i0 ^ X[0]
            dma(vD + (0 if (pat == "hi" and not arot) else i), sQ, sT + t, 1024 * i, ("Q", t))

    def ldV(t, only=None):
        if only is not None:
            for i0 in range(4):
                i = i0 ^ X[0]
                if i in only:
                    e(f"buffer_load_dwordx4 {v4(V[t] + 4*i)}, v{vV+i}, s[{sV}:{sV+3}], s{sT+t} offen {ld}")
                    ops.append(("V", t))
            return
        if t < 0 and "v" in nohalo:
            return
        if t < 0:
            for i in range(2):
                e(f"buffer_load_dwordx4 {v4(VH + 4*i)}, v{vHV+i}, s[{sV}:{sV+3}], s{sHalo} offen {hld}")
                ops.append(("V", -1))
            return
        for i0 in range(4):
            i = i0 ^ X[0]
            if cap and len(ops) >= cap: e(f"s_waitcnt vmcnt({cap-1})")
            e(f"buffer_load_dwordx4 {v4(V[t] + 4*i)}, v{(vL if (arot and arotv) else vV)+i}, s[{sV}:{sV+3}], s{sT+t} offen {ld}")
            ops.append(("V", t))

    vcount = [0]

    def variants(spec, sreg, body):
        if not spec:
            X[0] = 0
            body()
            return
        xs = [x for x in range(4) if all(spec[j] != '-' or not (x >> j) & 1 for j in range(2))]
        k = vcount[0]; vcount[0] += 1
        for x in xs[1:]:
            if fast is not None and sreg == sX:
                e(f"s_cmp_eq_u32 s{sW}, {(x >> 1) | ((x & 1) << 1)}")
                e(f"s_cbranch_scc1 L_var{k}_{x}")
                continue
            e(f"s_cmp_eq_u32 s{sreg}, {x}")
            e(f"s_cbranch_scc1 L_var{k}_{x}")
        n0 = len(ops)
        m0 = m0set[0]
        for idx, x in enumerate(xs):
            if idx:
                lab(f"L_var{k}_{x}")
                del ops[n0:]
                m0set[0] = m0
            X[0] = x
            body()
            if idx != len(xs) - 1:
                e(f"s_branch L_var{k}_end")
        lab(f"L_var{k}_end")
        X[0] = 0

    def wait_for(tagset):
        if not any(t in tagset for t in ops):
            return
        last = max(i for i, t in enumerate(ops) if t in tagset)
        n = len(ops) - 1 - last
        assert n <= 63
        e(f"s_waitcnt vmcnt({n})")

    def grp(c, ci):
        f = dict(k=ldK, q=ldQ, v=ldV)[c]
        h = dict(k=hk, q=None, v=hv)[c]
        if c == "v" and isinstance(h, str):
            pos = int(h[1]) if len(h) > 1 and h[1].isdigit() else 0
            for t in range(N - 1):
                if t == pos:
                    if h[0] == "p":
                        ldV(-1); ldV(N - 1, (2, 3))
                    else:
                        ldV(N - 1, (2, 3)); ldV(-1)
                ldV(t)
            ldV(N - 1, (0, 1))
            return
        for t in range(N + 1):
            if h == t:
                f(-1)
            if t < N:
                f(t)
            if fast is not None and ci == 0 and t == fast:
                for s_ in late:
                    e(s_)
            if touch and ci == 0 and t == tpos:
                for ch in touch:
                    srd = dict(q=sQ, v=sV, o=sO)[ch]
                    e(f"buffer_load_dword v{vF}, off, s[{srd}:{srd+3}], s{sT} nt")
                    ops.append(("T", 0))
            if diag == f"kt{t}" and c == "k":
                e("s_memrealtime s[50:51]")
            if diag == f"kw{t}" and c == "k":
                e("s_waitcnt vmcnt(0)")
                e("s_memrealtime s[50:51]")
            if sync == "flag" and ibar == "k0" and ci == 0 and t == 0:
                e("s_barrier")

    if order[0] == "k":
        first_off = KH if hk == 0 else KB
    elif order[0] == "q":
        first_off = QB
    else:
        first_off = None
    if first_off is not None:
        e(f"s_add_u32 m0, s{sLds}, {first_off}")
        m0set[0] = first_off

    def head():
        e("s_waitcnt lgkmcnt(0)")
        if arot:
            e(f"s_sub_u32 s{sK}, s{sK}, 4096")
            e(f"s_subb_u32 s{sK+1}, s{sK+1}, 0")
        if diag == "head":
            e("s_memrealtime s[50:51]")
        if dlyodd:
            k_ = vcount[0] * 10 + X[0]
            e("s_bitcmp1_b32 s2, 0")
            e(f"s_cbranch_scc0 L_nd{k_}")
            e("s_memrealtime s[32:33]")
            e("s_waitcnt lgkmcnt(0)")
            lab(f"L_dl{k_}")
            e("s_memrealtime s[34:35]")
            e("s_waitcnt lgkmcnt(0)")
            e("s_sub_u32 s34, s34, s32")
            e(f"s_cmp_lt_u32 s34, {dlyodd}")
            e(f"s_cbranch_scc1 L_dl{k_}")
            lab(f"L_nd{k_}")
        for i in range(extra):
            e(f"s_xor_b32 s31, s{sT + i // 4}, 0x800000")
            e(f"buffer_load_dwordx4 a[144:147], v{vV + i % 4}, s[{sQ}:{sQ+3}], s31 offen nt")
            ops.append(("X", 0))
        if stamp and not stamp2:
            e("s_memrealtime s[52:53]")
        if sync == "flag" and ibar == "start":
            e("s_barrier")

    def part(cs):
        for c in cs:
            grp(c, order.index(c))
            if diag == "end" + c:
                e("s_memrealtime s[50:51]")
            if c in phase:
                e("s_barrier")

    if rpart == "kqv":
        variants(rot, sX, lambda: (head(), part(order)))
    elif rpart == "v":
        head(); part(order[:2])
        variants(rot, sX, lambda: part(order[2]))
    elif rpart == "kq":
        variants(rot, sX, lambda: (head(), part(order[:2])))
        m0set[0] = None
        part(order[2])
    elif rpart == "k":
        variants(rot, sX, lambda: (head(), part(order[:1])))
        m0set[0] = None
        part(order[1:])
    if stamp:
        e("s_memrealtime s[52:53]" if stamp2 else "s_memrealtime s[54:55]")
        e("s_waitcnt lgkmcnt(0)")

    if diag == "issue":
        e("s_memrealtime s[50:51]"); e("s_waitcnt lgkmcnt(0)")
    if diag in ("head", "endk", "endq", "endv") or (diag and diag[:2] in ("kt", "kw")):
        e("s_waitcnt lgkmcnt(0)")
    if diag == "sph":
        e("s_memrealtime s[48:49]"); e("s_waitcnt lgkmcnt(0)")
    signal("issue")
    com("ds_read addresses")
    e(f"v_lshrrev_b32 v{t0}, 4, v0")
    e(f"v_and_b32 v{t1}, 15, v0")
    e(f"v_lshrrev_b32 v{t2}, 2, v{t1}")
    e(f"v_and_b32 v{t3}, 3, v{t1}")
    if pat == "hi":
        e(f"v_lshrrev_b32 v{vD+1}, 1, v{t3}")
        e(f"v_add_u32 v{vD+1}, v{vD+1}, v{t2}")
        e(f"v_lshlrev_b32 v{vD+1}, 9, v{vD+1}")
        e(f"v_lshlrev_b32 v{t2}, 8, v{t1}")
        if arot:
            e(f"v_sub_u32 v{vD+1}, v{vD+1}, v{t2}")
            e(f"v_xor_b32 v{t2}, s6, v{t2}")
            e(f"v_add_u32 v{vD+1}, v{vD+1}, v{t2}")
    else:
        e(f"v_lshl_add_u32 v{t2}, v{t3}, 2, v{t2}")
        e(f"v_lshlrev_b32 v{t2}, 8, v{t2}")
    e(f"v_add_u32 v{t2}, s{sLds}, v{t2}")
    if swz == "full" and pat != "hi":
        e(f"v_xor_b32 v{t0}, v{t0}, v{t1}")
    else:
        e(f"v_lshl_add_u32 v{t0}, v{t3}, 2, v{t0}")
    e(f"v_lshlrev_b32 v{t0}, 4, v{t0}")
    e(f"v_add_u32 v{vR}, v{t0}, v{t2}")
    for kk in range(1, 4):
        e(f"v_xor_b32 v{t1}, {64*kk}, v{t0}")
        e(f"v_add_u32 v{vR+kk}, v{t1}, v{t2}")

    def consts():
        e(f"s_mov_b32 s{sPLo}, 0x05040100")
        e(f"s_mov_b32 s{sPHi}, 0x07060302")
        e(f"s_mov_b32 s{sScale}, 0x3db504f3")
        e(f"s_mov_b32 s{sLog2e}, 0x3fb8aa3b")
        e(f"s_mov_b32 s{sLog2e+1}, 0x3fb8aa3b")
        e(f"s_mov_b32 s{sHiMask}, 0xffff0000")
        tab = {
            selT: [0x03020100, 0x05040302, 0x07060504, 0x07060706, 0x07060706],
            selA: [0x01000c0c] * 4 + [0x05040c0c],
            selB: [0x03020c0c] * 3 + [0x05040c0c, 0x07060c0c],
            sel1: [0x03020100, 0x01000c0c] + [0x0c0c0c0c] * 3,
            sel2: [0x0c0c0c0c, 0x0c0c0302, 0x03020100, 0x01000c0c, 0x0c0c0c0c],
            sel3: [0x0c0c0c0c] * 3 + [0x0c0c0302, 0x03020100],
        }
        for reg, vals in tab.items():
            e(f"v_mov_b32 v{reg}, {vals[2]:#x}")
        e(f"v_mov_b32 v{biasA}, 0")
        e(f"v_mov_b32 v{biasB}, 0")
        if not (arot and arotv):
            for dt in range(8):
                e(f"v_mov_b32 v{Vp + 4*dt + 2}, 0")
            e(f"v_mov_b32 v{P[0] + 2}, 0")
            e(f"v_mov_b32 v{P[1]}, 0")
        for m in (0, 1, 3, 4):
            mk = mask_where(lambda l: m0_of_lane(l) == m)
            e(f"s_mov_b32 exec_lo, {mk & 0xffffffff:#x}")
            e(f"s_mov_b32 exec_hi, {mk >> 32:#x}")
            for reg, vals in tab.items():
                if vals[m] != vals[2]:
                    e(f"v_mov_b32 v{reg}, {vals[m]:#x}")
            if m <= 1:
                e(f"v_mov_b32 v{biasA}, s{sBias}")
            if m == 0:
                e(f"v_mov_b32 v{biasB}, s{sBias}")
        e("s_mov_b64 exec, -1")
        if arot and arotv:
            sel0 = vE + 1
            e(f"v_mov_b32 v{sel0}, 0x0c0c0c0c")
            e(f"s_bitcmp1_b32 s{sX}, 0")
            e(f"s_cselect_b32 s3, 16, 0")
            for r_ in (sel1, sel2, sel3):
                e(f"v_alignbit_b32 v{r_}, v{r_}, v{r_}, s3")
            e(f"s_bitcmp1_b32 s{sX}, 1")
            e(f"s_cbranch_scc0 L_noswap")
            e(f"v_swap_b32 v{sel0}, v{sel1}")
            e(f"v_swap_b32 v{sel2}, v{sel3}")
            lab("L_noswap")

    def rd(dst, kk, off):
        e(f"ds_read_b128 {a4(dst + 4*kk)}, v{vR+kk} offset:{off}")

    X1 = [tmp + t for t in range(4)]
    X2 = [tmp + 4 + t for t in range(4)]
    X3 = [tmp + 8 + t for t in range(4)]
    A = [tmp + 12 + 2 * t for t in range(4)]

    def mf(t, kk, which):
        if which == 0:
            c = "0" if kk == 0 else v4(Sp[t])
            e(f"v_mfma_f32_16x16x32_bf16 {v4(Sp[t])}, {a4(KF[t] + 4*kk)}, {a4(QF[t] + 4*kk)}, {c}")
        else:
            c = "0" if kk == 0 else v4(Sc[t])
            e(f"v_mfma_f32_16x16x32_bf16 {v4(Sc[t])}, {a4(KF[t+1] + 4*kk)}, {a4(QF[t] + 4*kk)}, {c}")

    def extract(t):
        o = [f"v_cvt_pk_bf16_f32 v{X1[t]}, v{Sp[t]+2}, v{Sp[t]+3}",
             f"v_cvt_pk_bf16_f32 v{X2[t]}, v{Sc[t]}, v{Sc[t]+1}",
             f"v_cvt_pk_bf16_f32 v{X3[t]}, v{Sc[t]+2}, v{Sc[t]+3}",
             f"v_perm_b32 v{X1[t]}, v{X2[t]}, v{X1[t]}, v{selT}",
             f"v_perm_b32 v{A[t]}, v{X3[t]}, v{X1[t]}, v{selA}",
             f"v_perm_b32 v{A[t]+1}, v{X3[t]}, v{X1[t]}, v{selB}",
             f"v_mul_f32 v{A[t]}, s{sScale}, v{A[t]}",
             f"v_mul_f32 v{A[t]+1}, s{sScale}, v{A[t]+1}",
             f"v_cvt_pk_bf16_f32 v{PW+t}, v{A[t]}, v{A[t]+1}"]
        if t == 0:
            o += [f"v_lshlrev_b32 v{A[0]}, 16, v{PW}",
                  f"v_and_b32 v{A[0]+1}, s{sHiMask}, v{PW}",
                  f"v_add_f32 v{A[0]}, v{A[0]}, v{biasA}",
                  f"v_add_f32 v{A[0]+1}, v{A[0]+1}, v{biasB}",
                  f"v_cvt_pk_bf16_f32 v{PW}, v{A[0]}, v{A[0]+1}"]
        return o

    if pipeS:
        consts()
        com("K fragments")
        wait_for({("K", t) for t in range(-1, N)})
        for t in range(-1, N):
            if t == 2:
                e("s_waitcnt lgkmcnt(4)")
            for kk in range(4):
                if t < 0 and pat == "hi":
                    e(f"v_sub_u32 v{tmp+kk}, v{vR+kk}, v{vD+1}")
                    e(f"ds_read_b128 {a4(KF[0] + 4*kk)}, v{tmp+kk} offset:{KH}")
                else:
                    rd(KF[t + 1], kk, KB + 4096 * t)
        for t in range(N):
            com(f"S tile {t}")
            wait_for({("Q", t)})
            if t == N - 1:
                signal("kq")
            if t == 0:
                e("s_waitcnt lgkmcnt(8)")
            for kk in range(4):
                rd(QF[t], kk, QB + 4096 * t)
            fill = extract(t - 1) if t else []
            if fill:
                e("s_nop 2")
                for s_ in fill:
                    e(s_)
            for kk in range(4):
                e(f"s_waitcnt lgkmcnt({3-kk})")
                mf(t, kk, 0)
                mf(t, kk, 1)
        e("s_nop 6")
        for s_ in extract(N - 1):
            e(s_)
        e("s_nop 0")
    else:
        com("fragment reads")
        wait_for({("K", t) for t in range(-1, N)} | {("Q", t) for t in range(N)})
        signal("kq")

        def rd_kk(kk):
            for t in range(-1, N):
                rd(KF[t + 1], kk, KB + 4096 * t)
                if t >= 0:
                    rd(QF[t], kk, QB + 4096 * t)

        rd_kk(0)
        consts()
        com("S = K Q^T, 8 independent accumulate chains")
        for kk in range(4):
            e("s_waitcnt lgkmcnt(0)")
            if kk < 3:
                rd_kk(kk + 1)
            for t in range(N):
                mf(t, kk, 0)
                mf(t, kk, 1)
        com("score extraction (bf16 rounding as in the reference)")
        e("s_nop 1")
        ex = [extract(t) for t in range(N)]
        for t in range(N):
            for s_ in ex[t][:3]:
                e(s_)
        for i in range(3, 9):
            for t in range(N):
                e(ex[t][i])
        for s_ in ex[0][9:]:
            e(s_)

    def transpose():
        e(f"v_permlane32_swap_b32 v{PW+1}, v{PW+3}")
        e(f"v_permlane32_swap_b32 v{PW}, v{PW+2}")
        e("s_nop 1")
        e(f"v_permlane16_swap_b32 v{PW+2}, v{PW+3}")
        e(f"v_permlane16_swap_b32 v{PW}, v{PW+1}")

    com("transpose: lane group t now owns tile t, 8 scores per lane")
    e("s_nop 0")
    transpose()
    E = tmp
    M = tmp + 8
    for g in (2, 3, 0, 1):
        e(f"v_lshlrev_b32 v{E+2*g}, 16, v{PW+g}")
        e(f"v_and_b32 v{E+2*g+1}, s{sHiMask}, v{PW+g}")
    e(f"v_max3_f32 v{M}, v{E+4}, v{E+5}, v{E+6}")
    e(f"v_max3_f32 v{M+1}, v{E+7}, v{E}, v{E+1}")
    e(f"v_max3_f32 v{M}, v{M}, v{E+2}, v{E+3}")
    e(f"v_max_f32 v{M}, v{M}, v{M+1}")
    if pk:
        for i in range(4):
            e(f"v_pk_add_f32 {v2(E+2*i)}, {v2(E+2*i)}, {v2(M)} op_sel_hi:[1,0] neg_lo:[0,1] neg_hi:[0,1]")
        for i in range(4):
            e(f"v_pk_mul_f32 {v2(E+2*i)}, {v2(E+2*i)}, s[{sLog2e}:{sLog2e+1}]")
    else:
        for i in range(8):
            e(f"v_sub_f32 v{E+i}, v{E+i}, v{M}")
        for i in range(8):
            e(f"v_mul_f32 v{E+i}, s{sLog2e}, v{E+i}")
    for i in range(8):
        e(f"v_exp_f32 v{E+i}, v{E+i}")
    S2 = tmp + 10
    if pk:
        e(f"v_pk_add_f32 {v2(M)}, {v2(E)}, {v2(E+2)}")
        e(f"v_pk_add_f32 {v2(S2)}, {v2(E+4)}, {v2(E+6)}")
        e(f"v_pk_add_f32 {v2(M)}, {v2(M)}, {v2(S2)}")
    else:
        e(f"v_add_f32 v{M}, v{E}, v{E+2}")
        e(f"v_add_f32 v{M+1}, v{E+1}, v{E+3}")
        e(f"v_add_f32 v{S2}, v{E+4}, v{E+6}")
        e(f"v_add_f32 v{S2+1}, v{E+5}, v{E+7}")
        e(f"v_add_f32 v{M}, v{M}, v{S2}")
        e(f"v_add_f32 v{M+1}, v{M+1}, v{S2+1}")
    e(f"v_add_f32 v{M}, v{M}, v{M+1}")
    e(f"v_rcp_f32 v{M}, v{M}")
    e("s_nop 0")
    if pk:
        for i in range(4):
            e(f"v_pk_mul_f32 {v2(E+2*i)}, {v2(E+2*i)}, {v2(M)} op_sel_hi:[1,0]")
    else:
        for i in range(8):
            e(f"v_mul_f32 v{E+i}, v{E+i}, v{M}")
    for g in (1, 3, 0, 2):
        e(f"v_cvt_pk_bf16_f32 v{PW+g}, v{E+2*g}, v{E+2*g+1}")
    e("s_nop 0")
    transpose()

    if diag == "sph":
        e("s_memrealtime s[50:51]")
    signal("s")
    if stamp2:
        e("s_memrealtime s[54:55]")
    def perm_v(src, slot, halo=False):
        out = []
        for dt in range(8):
            q = dt >> 1
            sel = sPHi if dt & 1 else sPLo
            if not halo:
                out.append(f"v_perm_b32 v{Vp + 4*dt + 2*slot}, v{src + 4 + q}, v{src + q}, s{sel}")
                out.append(f"v_perm_b32 v{Vp + 4*dt + 2*slot + 1}, v{src + 12 + q}, v{src + 8 + q}, s{sel}")
            else:
                out.append(f"v_perm_b32 v{Vp + 4*dt + 2*slot + 1}, v{src + 4 + q}, v{src + q}, s{sel}")
                if arot and arotv:
                    out.append(f"v_perm_b32 v{Vp + 4*dt + 2*slot}, v{src + 4 + q}, v{src + q}, s{sel}")
        return out

    def cvts(t, rr):
        o = O[OI(t)]
        return [f"v_cvt_pk_bf16_f32 v{V[t] + 4*rr + q}, v{o + 8*q + rr}, v{o + 8*q + 4 + rr}" for q in range(4)]

    def store(t, rr):
        if diag == "pv1" and t == 0 and rr == 0:
            e("s_memrealtime s[50:51]")
        if diag == "pvall" and t == 3 and rr == 3:
            e("s_memrealtime s[50:51]")
        if win and sum(1 for o in ops if o[0] == "O") >= win:
            e(f"s_waitcnt vmcnt({win-1})")
        e(f"buffer_store_dwordx4 {v4(V[t] + 4*rr)}, v{vV + rr}, s[{sO}:{sO+3}], s{sT + t} offen {stl.replace('_', '') if (stl is not None and t >= 2) else st}")
        ops.append(("O", t))

    def pperm(t):
        slot = t & 1
        cur, prev = 2 * slot, 2 * (1 - slot)
        p = P[slot]
        if arot and arotv:
            e(f"v_perm_b32 v{p + prev}, v{PW+t}, v{PW+t}, v{vE+1}")
        e(f"v_perm_b32 v{p + prev + 1}, v{PW+t}, v{PW+t}, v{sel1}")
        e(f"v_perm_b32 v{p + cur}, v{PW+t}, v{PW+t}, v{sel2}")
        e(f"v_perm_b32 v{p + cur + 1}, v{PW+t}, v{PW+t}, v{sel3}")

    def deferred_stores():
        def sbody():
            for t2 in range(N - 1):
                for r0 in range(4):
                    if lateC:
                        for s_ in cvts(t2, r0 ^ X[0]):
                            e(s_)
                    store(t2, r0 ^ X[0])
        variants(rots, sXs, sbody)

    def pv_tile(t, fillprev):
        slot = t & 1
        pv = perm_v(V[t], slot)
        fill = []
        if fillprev:
            for r0 in range(4):
                rr = r0 ^ X[0]
                fill += cvts(t - 1, rr)
                if fillprev == "store":
                    fill.append(("store", t - 1, rr))
        def put(x):
            if isinstance(x, tuple):
                store(x[1], x[2])
            else:
                e(x)
        for s_ in pv[:6]:
            e(s_)
        k = 6
        per = 3 if fillprev == "store" else 2
        for dt in range(8):
            e(f"v_mfma_f32_16x16x32_bf16 {v4(O[OI(t)] + 4*dt)}, {v4(P[slot])}, {v4(Vp + 4*dt)}, 0")
            for s_ in pv[k:k + 2]:
                e(s_)
            k += 2
            for s_ in fill[:per]:
                put(s_)
            fill = fill[per:]
        for s_ in fill:
            put(s_)

    if sync == "sbar":
        nb = int(sig[1]) if sig[0] == "p" else 0
        if nb == 0 and sig != "imm":
            e("s_barrier")
        if diag in ("pv1", "pvall"):
            e("s_memrealtime s[48:49]")
        if gate:
            lab("L_gate")
            e("s_memrealtime s[34:35]")
            e("s_waitcnt lgkmcnt(0)")
            e("s_sub_u32 s34, s34, s32")
            e(f"s_cmp_lt_u32 s34, {gate}")
            e("s_cbranch_scc1 L_gate")
        def pvall():
            for t in range(N):
                com(f"PV tile {t}")
                pperm(t)
                if t == 0:
                    wait_for({("V", -1)})
                    for s_ in perm_v(VH, 1, halo=True):
                        e(s_)
                if t == nb and nb > 0:
                    e("s_nop 4")
                    for rr in range(4):
                        for s_ in cvts(t - 1, rr):
                            e(s_)
                    e("s_barrier")
                    for t2 in range(nb):
                        for rr in range(4):
                            store(t2, rr)
                pre = pre3 and t == N - 1 and t > nb
                if pre:
                    e("s_nop 4")
                    for r0 in range(4):
                        rr = r0 ^ X[0]
                        for s_ in cvts(t - 1, rr):
                            e(s_)
                        store(t - 1, rr)
                wait_for({("V", t)})
                if t == N - 1 and stamp:
                    e("s_memrealtime s[58:59]" if stamp2 else "s_memrealtime s[56:57]")
                pv_tile(t, None if t == 0 or t == nb or pre else ("store" if t > nb else True))
            if pvvar:
                e("s_nop 7")
                for r0 in range(4):
                    rr = r0 ^ X[0]
                    for s_ in cvts(N - 1, rr):
                        e(s_)
                    store(N - 1, rr)
        variants(pvvar, sXs, pvall)
    for t in range(N if sync != "sbar" else 0):
        com(f"PV tile {t}")
        slot = t & 1
        pperm(t)
        if t == 0:
            wait_for({("V", -1)})
            for s_ in perm_v(VH, 1, halo=True):
                e(s_)
        if t == N - 1 and not lateC:
            e("s_nop 4")
            for rr in range(4):
                for s_ in cvts(t - 1, rr):
                    e(s_)
        if t == N - 1 and stamp2:
            e("s_memrealtime s[56:57]")
        wait_for({("V", t)})
        signal(f"v{t}")
        if t == N - 1:
            if stamp:
                e("s_memrealtime s[58:59]" if stamp2 else "s_memrealtime s[56:57]")
            if sync == "bar":
                e("s_barrier")
                deferred_stores()
        pv_tile(t, 0 < t < N - 1 and not lateC)
    t = N - 1
    if sync == "late":
        e("s_barrier")
        deferred_stores()
    elif sync == "flag":
        e("s_nop 7")
        for rr in range(4):
            for s_ in cvts(t, rr):
                e(s_)
        lab("L_poll")
        e(f"ds_read_b32 v{vF+1}, v{vF}")
        e("s_waitcnt lgkmcnt(0)")
        e(f"v_readfirstlane_b32 s3, v{vF+1}")
        e("s_cmp_lt_u32 s3, 4")
        e("s_cbranch_scc1 L_poll")
        if rott or trev:
            def tbody():
                for t0_ in range(N):
                    t2 = (t0_ ^ X[0]) if not trev else (N - 1 - t0_)
                    for r0 in range(4):
                        store(t2, r0)
            variants(rott, sXs, tbody)
        else:
            deferred_stores()
    elif sync == "none":
        deferred_stores()
    if sync == "flag":
        def lbody():
            for r0 in range(4):
                store(t, r0 ^ X[0])
    else:
        e("s_nop 7")

        def lbody():
            for r0 in range(4):
                rr = r0 ^ X[0]
                for s_ in cvts(t, rr):
                    e(s_)
                store(t, rr)
    if not (rott or trev or pvvar):
        variants(rots, sXs, lbody)

    if stamp:
        if not stamp2: e("s_memrealtime s[58:59]")
        e("s_waitcnt vmcnt(0)")
        e("s_memrealtime s[60:61]")
        e("s_getreg_b32 s62, hwreg(HW_REG_XCC_ID)")
        e("s_memtime s[70:71]")
        e("s_waitcnt lgkmcnt(0)")
        e("s_sub_u32 s63, s70, s68")
        e(f"s_mul_i32 s3, s2, {WPB}"); e(f"s_add_u32 s3, s3, s{sW}"); e("s_lshl_b32 s3, s3, 5")
        e("s_mov_b32 s64, s48"); e("s_and_b32 s65, s49, 0xffff"); e("s_mov_b32 s66, 0x1000000"); e("s_mov_b32 s67, 0x20000")
        for k, sr in enumerate((50, 52, 54, 56, 58, 60, 62, 63)):
            e(f"v_mov_b32 v{8+k}, s{sr}")
        e("v_mov_b32 v1, 0")
        e("s_mov_b64 exec, 1")
        e("buffer_store_dwordx4 v[8:11], v1, s[64:67], s3 offen")
        e("buffer_store_dwordx4 v[12:15], v1, s[64:67], s3 offen offset:16")
    if diag:
        e("s_waitcnt vmcnt(0) lgkmcnt(0)")
        e("s_barrier")
        if diag in ("span", "zero"):
            e("s_memrealtime s[50:51]"); e("s_waitcnt lgkmcnt(0)")
        e(f"s_cmp_lg_u32 s{sW}, {3 if diag == 'issue' else dw}")
        e("s_cbranch_scc1 L_done")
        if diag == "span":
            lab("L_q")
            e("s_memrealtime s[60:61]")
            e("s_waitcnt lgkmcnt(0)")
            e("s_sub_u32 s60, s60, s48")
            e("s_cmp_lt_u32 s60, 1500")
            e("s_cbranch_scc1 L_q")
        e("s_mov_b32 s54, 256"); e("s_mov_b32 s55, 0x20000")
        e(f"v_mov_b32 v{vF}, 0")
        e("s_not_b32 s56, s48")
        e(f"v_mov_b32 v2, s56")
        if own:
            e("s_sub_u32 s50, s50, s48")
            e("s_mov_b32 s56, -1")
            e(f"v_mov_b32 v2, s56")
        e(f"v_mov_b32 v3, s{48 if diag == 'spread' else 50}")
        e("s_mov_b64 exec, 1")
        e(f"buffer_atomic_umax v2, v{vF}, s[52:55], 0 offen")
        e(f"buffer_atomic_{'add' if avg else 'umax'} v3, v{vF}, s[52:55], 0 offen offset:64")
        e("s_waitcnt vmcnt(0)")
        e(f"v_mov_b32 v{vF+1}, 1")
        e(f"buffer_atomic_add v{vF+1}, v{vF}, s[52:55], 0 offen offset:128 sc0")
        e("s_waitcnt vmcnt(0)")
        e(f"v_readfirstlane_b32 s3, v{vF+1}")
        e("s_nop 3")
        e("s_cmp_lg_u32 s3, 255")
        e("s_cbranch_scc1 L_done")
        e("s_memrealtime s[58:59]")
        e(f"buffer_load_dword v2, v{vF}, s[52:55], 0 offen sc1")
        e(f"buffer_load_dword v3, v{vF}, s[52:55], 0 offen offset:64 sc1")
        e("s_waitcnt vmcnt(0) lgkmcnt(0)")
        e("v_readfirstlane_b32 s4, v2")
        e("v_readfirstlane_b32 s5, v3")
        e("s_nop 3")
        e("s_not_b32 s4, s4")
        if diag == "zero":
            e("s_mov_b32 s6, 0")
        else:
            e("s_sub_u32 s6, s5, s4")
        e("v_mov_b32 v2, s6")
        e(f"buffer_store_dword v2, v{vF}, s[52:55], 0 offen offset:16")
        e(f"s_mul_i32 s6, s6, {dk}")
        if avg:
            e("s_lshr_b32 s6, s6, 8")
        e("s_min_u32 s6, s6, 20000")
        lab("L_spin")
        e("s_memrealtime s[60:61]")
        e("s_waitcnt lgkmcnt(0)")
        e("s_sub_u32 s60, s60, s58")
        e("s_cmp_lt_u32 s60, s6")
        e("s_cbranch_scc1 L_spin")
    lab("L_done")
    e("s_endpgm")

    out = HEADER
    out += f"; @launch grid=({G},1,1) block=({64*WPB},1,1) lds={LDS}\n"
    out += '.amdgcn_target "amdgcn-amd-amdhsa--gfx950"\n.text\n'
    out += f".globl {NAME}_kernel\n.p2align 8\n.type {NAME}_kernel,@function\n{NAME}_kernel:\n"
    out += "\n".join(L) + "\n"
    out += f""".section .rodata,"a"
.p2align 6
.amdhsa_kernel {NAME}_kernel
  .amdhsa_next_free_vgpr {total}
  .amdhsa_next_free_sgpr {72 if (stamp or diag) else 48}
  .amdhsa_accum_offset {accum}
  .amdhsa_group_segment_fixed_size 0
  .amdhsa_kernarg_size 48
  .amdhsa_user_sgpr_count 2
  .amdhsa_user_sgpr_kernarg_segment_ptr 1
  .amdhsa_system_sgpr_workgroup_id_x 1
.end_amdhsa_kernel
"""
    return out, 1024


if __name__ == "__main__":
    import mkco_lib
    specs = []
    for line in sys.stdin:
        p = line.split()
        if not p:
            continue
        kw = {}
        for kv in p[1:]:
            k, v = kv.split('=')
            v = v.replace('+', ' ')
            if v in ('True', 'False'):
                v = v == 'True'
            elif v.isdigit() and k not in ('rot', 'rots', 'rott', 'resx', 'pvvar'):
                v = int(v)
            kw[k] = v
        s, nw = gen(**kw)
        open(p[0] + '.s', 'w').write(s)
        specs.append(mkco_lib.build(p[0] + '.s') + (f":{nw}" if kw.get('stamp') else ""))
    print(" ".join(specs))
```
